```python
import torch

def _softmax(x, axis=-1):
    return torch.softmax(x, dim=axis)
def _gelu(x):
    return torch.nn.functional.gelu(x, approximate="tanh")
def _silu(x):
    return torch.nn.functional.silu(x)
def _sigmoid(x):
    return torch.sigmoid(x)
def _layernorm(x, axis=-1, eps=1e-5):
    m = x.mean(dim=axis, keepdim=True)
    v = x.var(dim=axis, keepdim=True, unbiased=False)
    return (x - m) / torch.sqrt(v + eps)
def _scatter_add(tgt, idx, src, axis=0):
    return tgt.clone().index_add_(axis, idx, src)
def _segment_sum(src, seg, n):
    out = torch.zeros((n,) + src.shape[1:], dtype=src.dtype)
    return out.index_add_(0, seg, src)
def _pad(x, pw):
    flat = tuple(v for pair in reversed(pw) for v in pair)
    return torch.nn.functional.pad(x, flat)

kernel_name = 'standalone__kv_cache_quant_int4_int2_kv_with_per_channel_or_per_token_scales__decode'

def setup_inputs():

    _w = (lambda a: (lambda t: t.to(torch.bfloat16) if t.is_floating_point() else t)(torch.as_tensor(a)))
    B = 2
    Sq = 1
    Skv = 32768
    Hq = 32
    Hkv = 4
    Dh = 128
    bits = 3
    G = 128
    if G <= 0 or G >= Skv:
        G = max(1, Skv // 2)
    Skv = (Skv // G) * G
    ngk = Skv // G
    qmax = (1 << bits) - 1
    return {
        "q": _w((lambda *s: torch.randn(*s, dtype=torch.bfloat16) * 1.6)(B, Hq, Sq, Dh)),
        "qk": _w(torch.randint(0, qmax + 1, (B, Hkv, Skv, Dh)).to(torch.int32)),
        "qv": _w(torch.randint(0, qmax + 1, (B, Hkv, Skv, Dh)).to(torch.int32)),
        "k_scales": _w(torch.abs((lambda *s: torch.randn(*s, dtype=torch.bfloat16) * 1.6)(B, Hkv, ngk, Dh)) * 0.05 + 0.02),
        "k_zeros": _w((lambda *s: torch.randn(*s, dtype=torch.bfloat16) * 1.6)(B, Hkv, ngk, Dh) + float(qmax) / 2.0),
        "v_scales": _w(torch.abs((lambda *s: torch.randn(*s, dtype=torch.bfloat16) * 0.05)(B, Hkv, Skv, 1)) * 0.05 + 0.02),
        "v_zeros": _w((lambda *s: torch.randn(*s, dtype=torch.bfloat16) * 0.05)(B, Hkv, Skv, 1) + float(qmax) / 2.0),
    }

def reference(q, qk, qv, k_scales, k_zeros, v_scales, v_zeros):
    B, Hq, Sq, Dh = q.shape
    Hkv, Skv = qk.shape[1], qk.shape[2]
    ngk = k_scales.shape[2]
    G = Skv // ngk
    ks = (lambda x, n, axis: torch.repeat_interleave(x, n, dim=axis))(k_scales, G, axis=2)
    kz = (lambda x, n, axis: torch.repeat_interleave(x, n, dim=axis))(k_zeros, G, axis=2)
    k = ((lambda x, dt: x.to(dt))(qk, q.dtype) - kz) * ks
    v = ((lambda x, dt: x.to(dt))(qv, q.dtype) - v_zeros) * v_scales
    rep = Hq // Hkv
    if rep > 1:
        k = (lambda x, n, axis: torch.repeat_interleave(x, n, dim=axis))(k, rep, axis=1)
        v = (lambda x, n, axis: torch.repeat_interleave(x, n, dim=axis))(v, rep, axis=1)
    scale = float(Dh) ** -0.5
    logits = torch.einsum("bhqd,bhkd->bhqk", q, k) * scale
    p = _softmax(logits, axis=-1)
    o = torch.einsum("bhqk,bhkd->bhqd", p, v)
    return o
```

```python
import sys, math, struct, argparse

NAME = "standalone__kv_cache_quant_int4_int2_kv_with_per_channel_or_per_token_scales__decode"

HEADER = """; Kernarg layout for this problem (80 bytes, ptrs only, base s[0:1]):
"""

def f32bits(x):
    return struct.unpack("<I", struct.pack("<f", x))[0]

class Asm:
    def __init__(self):
        self.lines = []
        self.vm = []
        self.done = -1
    def __call__(self, s):
        self.lines.append("    " + s)
    def label(self, s):
        self.lines.append(s + ":")
    def comment(self, s):
        self.lines.append("    ; " + s)
    def vmem(self, s, tag):
        self(s)
        self.vm.append(tag)
        assert len(self.vm) - 1 - self.done <= 63, "too many VMEM in flight"
    def wait_vm(self, tags):
        last = max(i for i, t in enumerate(self.vm) if t in tags)
        if last <= self.done:
            return
        n = len(self.vm) - 1 - last
        assert n <= 63
        self.done = last
        self(f"s_waitcnt vmcnt({n})")
    def text(self):
        return "\n".join(self.lines) + "\n"

def vr(a, n=1):
    return f"v{a}" if n == 1 else f"v[{a}:{a+n-1}]"
def sr(a, n=1):
    return f"s{a}" if n == 1 else f"s[{a}:{a+n-1}]"

def gen_main(o, kname):
    R = o.ring
    nt = " nt" if o.nt else ""
    a = Asm()
    QP, SO, VS, VZ, CZ, T = 0, 16, 48, 64, 80, 84
    vK, vV, vM, vX = 92, 93, 94, 95
    RB = 96
    nvgpr = RB + 32 * R
    assert nvgpr <= 256
    sK, sV, sQ, sKS, sKZ, sVS, sVZ, sWS = 36, 40, 44, 48, 52, 56, 60, 64
    sW, sT0, sSm, sPair, sPerm, sC1, sHi = 4, 6, 10, 11, 12, 13, 14
    c1 = (128.0 ** -0.5) * math.log2(math.e)

    a.label(kname)
    a("s_cmp_ge_u32 s2, 256")
    a("s_cbranch_scc1 L_main_end")
    a(f"s_load_dwordx2 {sr(sK,2)}, s[0:1], 8")
    a("s_load_dwordx16 s[16:31], s[0:1], 0")
    a("s_load_dwordx4 s[32:35], s[0:1], 64")
    a(f"v_lshrrev_b32 v1, 6, v0")
    a(f"v_and_b32 v2, 15, v0")
    a(f"v_readfirstlane_b32 s3, v1")
    a(f"v_bfe_u32 v3, v0, 4, 2")
    a(f"s_mov_b32 {sr(sK+2)}, 0x8000000")
    a(f"s_mov_b32 {sr(sK+3)}, 0x20000")
    a(f"v_lshrrev_b32 v4, 2, v2")
    a(f"v_lshlrev_b32 v4, 12, v4")
    a(f"v_and_b32 v5, 3, v2")
    a(f"v_lshl_add_u32 v4, v5, 9, v4")
    if o.klayout == 0:
        a(f"v_lshl_add_u32 {vr(vK)}, v3, 5, v4")
    else:
        a(f"v_lshl_add_u32 {vr(vK)}, v3, 4, v4")
    if o.map == 0:
        a(f"s_lshl_b32 {sr(sW)}, s2, 3")
        a(f"s_add_u32 {sr(sW)}, {sr(sW)}, s3")
    elif o.map == 1:
        a(f"s_lshr_b32 s5, s2, 5")
        a(f"s_lshl_b32 s5, s5, 8")
        a(f"s_lshl_b32 {sr(sW)}, s3, 5")
        a(f"s_add_u32 {sr(sW)}, {sr(sW)}, s5")
        a(f"s_and_b32 s5, s2, 31")
        a(f"s_add_u32 {sr(sW)}, {sr(sW)}, s5")
    a(f"s_lshl_b32 {sr(sT0)}, {sr(sW)}, 16")
    a(f"s_add_u32 {sr(sT0+1)}, {sr(sT0)}, 0x4000")
    a(f"s_add_u32 {sr(sT0+2)}, {sr(sT0)}, 0x8000")
    a(f"s_add_u32 {sr(sT0+3)}, {sr(sT0)}, 0xc000")
    a(f"s_lshl_b32 {sr(sSm)}, {sr(sW)}, 8")
    a(f"s_lshr_b32 {sr(sPair)}, {sr(sW)}, 8")
    a(f"s_lshl_b32 {sr(sPair)}, {sr(sPair)}, 11")
    a(f"v_lshlrev_b32 v4, 4, v2")
    a(f"v_lshl_add_u32 {vr(vV)}, v3, 12, v4")
    if o.klayout == 0:
        a(f"v_lshlrev_b32 {vr(vX)}, 4, v3")
        a(f"v_and_b32 v5, 7, v2")
        a(f"v_lshl_add_u32 {vr(T)}, v5, 8, {vr(vX)}")
    else:
        a(f"v_lshlrev_b32 {vr(vX)}, 4, v3")
        a(f"v_lshlrev_b32 {vr(T+1)}, 3, v3")
        a(f"v_and_b32 v5, 7, v2")
        a(f"v_lshl_add_u32 {vr(T)}, v5, 8, {vr(T+1)}")
    a(f"v_lshrrev_b32 v5, 3, v2")
    a(f"v_sub_u32 v5, 0, v5")
    a(f"v_lshlrev_b32 {vr(vM)}, 16, v5")
    a(f"s_mov_b32 {sr(sPerm)}, 0x07060302")
    a(f"s_mov_b32 {sr(sC1)}, 0x{f32bits(c1):08x}")
    a(f"s_mov_b32 {sr(sHi)}, 0xffff0000")
    a("s_waitcnt lgkmcnt(0)")

    chunks = [("K", i) for i in range(8)] + [("V", i) for i in range(8)]
    def buf(ci):
        return RB + 32 * (ci % R)
    def issue(ci):
        kind, idx = chunks[ci]
        b = buf(ci)
        if kind == "K":
            j, u = idx >> 1, idx & 1
            for m in range(4):
                for h in range(2):
                    off = u * 2048 + m * 128 + (h * 16 if o.klayout == 0 else h * 64)
                    a.vmem(f"buffer_load_dwordx4 {vr(b + 8*m + 4*h, 4)}, {vr(vK)}, {sr(sK,4)}, {sr(sT0+j)} offen offset:{off}{nt}", ("c", ci))
        else:
            j, half = idx >> 1, idx & 1
            for e in range(8):
                off = e * 512 + half * 256
                a.vmem(f"buffer_load_dwordx4 {vr(b + 4*e, 4)}, {vr(vV)}, {sr(sV,4)}, {sr(sT0+j)} offen offset:{off}{nt}", ("c", ci))

    issue(0)
    def srd(d, p, size):
        a(f"s_mov_b32 {sr(d)}, {sr(p)}")
        a(f"s_mov_b32 {sr(d+1)}, {sr(p+1)}")
        a(f"s_mov_b32 {sr(d+2)}, 0x{size:x}")
        a(f"s_mov_b32 {sr(d+3)}, 0x20000")
    srd(sQ, 16, 16384)
    srd(sKS, 22, 524288)
    srd(sKZ, 24, 524288)
    if o.klayout == 0:
        for m in range(4):
            a.vmem(f"buffer_load_dwordx4 {vr(QP+4*m,4)}, {vr(T)}, {sr(sQ,4)}, {sr(sPair)} offen offset:{m*64}", "q")
        for m in range(4):
            a.vmem(f"buffer_load_dwordx4 {vr(SO+4*m,4)}, {vr(vX)}, {sr(sKS,4)}, {sr(sSm)} offen offset:{m*64}", "q")
        for m in range(4):
            a.vmem(f"buffer_load_dwordx4 {vr(SO+16+4*m,4)}, {vr(vX)}, {sr(sKZ,4)}, {sr(sSm)} offen offset:{m*64}", "q")
    else:
        for m in range(4):
            for h in range(2):
                a.vmem(f"buffer_load_dwordx2 {vr(QP+4*m+2*h,2)}, {vr(T)}, {sr(sQ,4)}, {sr(sPair)} offen offset:{m*64+h*32}", "q")
        for m in range(4):
            for h in range(2):
                a.vmem(f"buffer_load_dwordx2 {vr(SO+4*m+2*h,2)}, {vr(T+1)}, {sr(sKS,4)}, {sr(sSm)} offen offset:{m*64+h*32}", "q")
        for m in range(4):
            for h in range(2):
                a.vmem(f"buffer_load_dwordx2 {vr(SO+16+4*m+2*h,2)}, {vr(T+1)}, {sr(sKZ,4)}, {sr(sSm)} offen offset:{m*64+h*32}", "q")
    nfirst = R if o.klayout == 0 else min(R, 4)
    for ci in range(1, nfirst):
        issue(ci)
    srd(sV, 20, 0x8000000)
    srd(sVS, 26, 524288)
    srd(sVZ, 28, 524288)
    srd(sWS, 34, 0x20000000)
    def issue_vsz():
        for j in range(4):
            a.vmem(f"buffer_load_dwordx4 {vr(VS+4*j,4)}, {vr(vX)}, {sr(sVS,4)}, {sr(sSm)} offen offset:{j*64}", "vs")
        for j in range(4):
            a.vmem(f"buffer_load_dwordx4 {vr(VZ+4*j,4)}, {vr(vX)}, {sr(sVZ,4)}, {sr(sSm)} offen offset:{j*64}", "vs")
    if o.klayout == 0:
        issue_vsz()

    a.wait_vm({"q"})
    if o.klayout != 0:
        for ci in range(nfirst, R):
            issue(ci)
        issue_vsz()
    for k in range(16):
        q, s = QP + k, SO + k
        t0, t1, t2, t3 = T + 4*(k & 1), T + 4*(k & 1) + 1, T + 4*(k & 1) + 2, T + 4*(k & 1) + 3
        a(f"v_lshlrev_b32 {vr(t0)}, 16, {vr(q)}")
        a(f"v_lshlrev_b32 {vr(t1)}, 16, {vr(s)}")
        a(f"v_and_b32 {vr(t2)}, {sr(sHi)}, {vr(q)}")
        a(f"v_and_b32 {vr(t3)}, {sr(sHi)}, {vr(s)}")
        a(f"v_mul_f32 {vr(t0)}, {vr(t0)}, {vr(t1)}")
        a(f"v_mul_f32 {vr(t2)}, {vr(t2)}, {vr(t3)}")
        a(f"v_and_b32 {vr(t1)}, {vr(vM)}, {vr(t0)}")
        a(f"v_and_b32 {vr(t3)}, {vr(vM)}, {vr(t2)}")
        a(f"v_sub_f32 {vr(t0)}, {vr(t0)}, {vr(t1)}")
        a(f"v_sub_f32 {vr(t2)}, {vr(t2)}, {vr(t3)}")
        a(f"v_perm_b32 {vr(q)}, {vr(t2)}, {vr(t0)}, {sr(sPerm)}")
    a("s_nop 1")
    for m in range(4):
        c = "0" if m == 0 else vr(CZ, 4)
        a(f"v_mfma_f32_16x16x32_bf16 {vr(CZ,4)}, {vr(SO+16+4*m,4)}, {vr(QP+4*m,4)}, {c}")
    a("s_nop 7")
    for r in range(4):
        a(f"v_sub_f32 {vr(CZ+r)}, 0, {vr(CZ+r)}")

    for ci in range(8):
        b = buf(ci)
        a.wait_vm({("c", ci)})
        for x in range(32):
            a(f"v_cvt_f32_i32 {vr(b+x)}, {vr(b+x)}")
        for m in range(4):
            for k in range(4):
                a(f"v_cvt_pk_bf16_f32 {vr(b+8*m+k)}, {vr(b+8*m+2*k)}, {vr(b+8*m+2*k+1)}")
        for m in range(4):
            c = vr(CZ, 4) if m == 0 else vr(SO + 4*ci, 4)
            a(f"v_mfma_f32_16x16x32_bf16 {vr(SO+4*ci,4)}, {vr(b+8*m,4)}, {vr(QP+4*m,4)}, {c}")
        if ci + R < 16:
            issue(ci + R)
        if ci >= 1:
            for r in range(4):
                x = SO + 4*(ci-1) + r
                a(f"v_add_f32_dpp {vr(x)}, {vr(x)}, {vr(x)} row_ror:8 row_mask:0xf bank_mask:0xf")
    a("s_nop 7")
    for r in range(4):
        x = SO + 28 + r
        a(f"v_add_f32_dpp {vr(x)}, {vr(x)}, {vr(x)} row_ror:8 row_mask:0xf bank_mask:0xf")

    m0, m1 = T, T + 1
    a(f"v_max3_f32 {vr(m0)}, {vr(SO)}, {vr(SO+1)}, {vr(SO+2)}")
    a(f"v_max3_f32 {vr(m1)}, {vr(SO+3)}, {vr(SO+4)}, {vr(SO+5)}")
    x = 6
    while x < 32:
        a(f"v_max3_f32 {vr(m0)}, {vr(m0)}, {vr(SO+x)}, {vr(SO+x+1)}")
        if x + 2 < 32:
            a(f"v_max3_f32 {vr(m1)}, {vr(m1)}, {vr(SO+x+2)}, {vr(SO+x+3)}")
        x += 4
    a(f"v_max_f32 {vr(m0)}, {vr(m0)}, {vr(m1)}")
    a(f"v_mov_b32 {vr(m1)}, {vr(m0)}")
    a("s_nop 1")
    a(f"v_permlane32_swap_b32 {vr(m0)}, {vr(m1)}")
    a("s_nop 1")
    a(f"v_max_f32 {vr(m0)}, {vr(m0)}, {vr(m1)}")
    a(f"v_mov_b32 {vr(m1)}, {vr(m0)}")
    a("s_nop 1")
    a(f"v_permlane16_swap_b32 {vr(m0)}, {vr(m1)}")
    a("s_nop 1")
    a(f"v_max_f32 {vr(m0)}, {vr(m0)}, {vr(m1)}")
    LDS_M, LDS_L, LDS_O = 0, 256, 512
    HS, WSTR = 528, 528 * 8
    a(f"v_mbcnt_lo_u32_b32 {vr(T+2)}, -1, 0")
    a(f"v_mbcnt_hi_u32_b32 {vr(T+2)}, -1, {vr(T+2)}")
    a(f"v_and_b32 {vr(T+3)}, 7, {vr(T+2)}")
    a(f"v_lshlrev_b32 {vr(T+3)}, 5, {vr(T+3)}")
    a(f"s_lshl_b32 s5, s3, 2")
    a(f"v_add_u32 {vr(vX)}, s5, {vr(T+3)}")
    a(f"ds_write_b32 {vr(vX)}, {vr(m0)} offset:{LDS_M}")
    a("s_waitcnt lgkmcnt(0)")
    a("s_barrier")
    a(f"ds_read_b128 {vr(T+4,4)}, {vr(T+3)} offset:{LDS_M}")
    a(f"ds_read_b128 {vr(CZ,4)}, {vr(T+3)} offset:{LDS_M+16}")
    a("s_waitcnt lgkmcnt(0)")
    a(f"v_max3_f32 {vr(m0)}, {vr(T+4)}, {vr(T+5)}, {vr(T+6)}")
    a(f"v_max3_f32 {vr(m1)}, {vr(T+7)}, {vr(CZ)}, {vr(CZ+1)}")
    a(f"v_max3_f32 {vr(m0)}, {vr(m0)}, {vr(CZ+2)}, {vr(CZ+3)}")
    a(f"v_max_f32 {vr(m0)}, {vr(m0)}, {vr(m1)}")
    a(f"v_mul_f32 {vr(vK)}, {sr(sC1)}, {vr(m0)}")
    assert 8 - 1 + R >= 8
    for x in range(32):
        a(f"v_fma_f32 {vr(SO+x)}, {vr(SO+x)}, {sr(sC1)}, -{vr(vK)}")
    for x in range(32):
        a(f"v_exp_f32 {vr(SO+x)}, {vr(SO+x)}")
    l0, l1 = T, T + 1
    a(f"v_add_f32 {vr(l0)}, {vr(SO)}, {vr(SO+1)}")
    a(f"v_add_f32 {vr(l1)}, {vr(SO+2)}, {vr(SO+3)}")
    for x in range(4, 32, 2):
        a(f"v_add_f32 {vr(l0)}, {vr(l0)}, {vr(SO+x)}")
        a(f"v_add_f32 {vr(l1)}, {vr(l1)}, {vr(SO+x+1)}")
    a(f"v_add_f32 {vr(l0)}, {vr(l0)}, {vr(l1)}")
    a(f"v_mov_b32 {vr(l1)}, {vr(l0)}")
    a("s_nop 1")
    a(f"v_permlane32_swap_b32 {vr(l0)}, {vr(l1)}")
    a("s_nop 1")
    a(f"v_add_f32 {vr(l0)}, {vr(l0)}, {vr(l1)}")
    a(f"v_mov_b32 {vr(l1)}, {vr(l0)}")
    a("s_nop 1")
    a(f"v_permlane16_swap_b32 {vr(l0)}, {vr(l1)}")
    a("s_nop 1")
    a(f"v_add_f32 {vr(l0)}, {vr(l0)}, {vr(l1)}")
    a(f"ds_write_b32 {vr(vX)}, {vr(l0)} offset:{LDS_L}")
    a.wait_vm({"vs"})
    for k in range(16):
        p0, p1 = SO + 2*k, SO + 2*k + 1
        t0, t1 = T + 2*(k & 3), T + 2*(k & 3) + 1
        a(f"v_lshlrev_b32 {vr(t0)}, 16, {vr(VS+k)}")
        a(f"v_and_b32 {vr(t1)}, {sr(sHi)}, {vr(VS+k)}")
        a(f"v_mul_f32 {vr(p0)}, {vr(p0)}, {vr(t0)}")
        a(f"v_mul_f32 {vr(p1)}, {vr(p1)}, {vr(t1)}")
        a(f"v_and_b32 {vr(t0)}, {vr(vM)}, {vr(p0)}")
        a(f"v_and_b32 {vr(t1)}, {vr(vM)}, {vr(p1)}")
        a(f"v_sub_f32 {vr(p0)}, {vr(p0)}, {vr(t0)}")
        a(f"v_sub_f32 {vr(p1)}, {vr(p1)}, {vr(t1)}")
        a(f"v_perm_b32 {vr(QP+k)}, {vr(p1)}, {vr(p0)}, {sr(sPerm)}")
    a("s_nop 1")
    for j in range(4):
        c = "0" if j == 0 else vr(CZ, 4)
        a(f"v_mfma_f32_16x16x32_bf16 {vr(CZ,4)}, {vr(VZ+4*j,4)}, {vr(QP+4*j,4)}, {c}")
    eLane, eW, eR, eG, eZ = VS, VS + 1, VS + 2, VS + 3, VS + 4
    a(f"v_mbcnt_lo_u32_b32 {vr(eLane)}, -1, 0")
    a(f"v_mbcnt_hi_u32_b32 {vr(eLane)}, -1, {vr(eLane)}")
    a(f"v_and_b32 {vr(eW)}, 7, {vr(eLane)}")
    a(f"v_mul_u32_u24 {vr(eW)}, {HS}, {vr(eW)}")
    a(f"v_bfe_u32 {vr(eR)}, {vr(eLane)}, 3, 1")
    a(f"v_lshl_add_u32 {vr(eW)}, {vr(eR)}, 8, {vr(eW)}")
    a(f"v_lshrrev_b32 {vr(eR)}, 4, {vr(eLane)}")
    a(f"v_lshl_add_u32 {vr(eW)}, {vr(eR)}, 6, {vr(eW)}")
    a(f"s_mul_i32 s5, s3, {WSTR}")
    a(f"v_add_u32 {vr(eW)}, s5, {vr(eW)}")
    a(f"s_mul_i32 s5, s3, {HS}")
    a(f"v_lshlrev_b32 {vr(eR)}, 3, {vr(eLane)}")
    a(f"v_add_u32 {vr(eR)}, s5, {vr(eR)}")
    a(f"s_lshl_b32 s5, s2, 3")
    a(f"s_add_u32 s5, s5, s3")
    a(f"s_lshl_b32 s5, s5, 10")
    a(f"v_lshlrev_b32 {vr(eG)}, 4, {vr(eLane)}")
    a(f"v_add_u32 {vr(eG)}, s5, {vr(eG)}")
    a(f"v_cmp_ne_u32 s[68:69], 0, {vr(vM)}")
    a("s_nop 3")
    a(f"v_add_f32_dpp {vr(eZ)}, {vr(CZ)}, {vr(CZ)} row_ror:8 row_mask:0xf bank_mask:0xf")

    for idx in range(8):
        ci = 8 + idx
        j, half = idx >> 1, idx & 1
        b = buf(ci)
        a.wait_vm({("c", ci)})
        for x in range(32):
            a(f"v_cvt_f32_i32 {vr(b+x)}, {vr(b+x)}")
        def pk(c):
            t = T + 4 * (c & 1)
            for p in range(4):
                a(f"v_cvt_pk_bf16_f32 {vr(t+p)}, {vr(b+8*p+c)}, {vr(b+8*p+4+c)}")
        def mf(c):
            t = T + 4 * (c & 1)
            acc = SO + 16*half + 4*c
            cc = "0" if j == 0 else vr(acc, 4)
            a(f"v_mfma_f32_16x16x32_bf16 {vr(acc,4)}, {vr(t,4)}, {vr(QP+4*j,4)}, {cc}")
        pk(0); pk(1); mf(0); pk(2); mf(1); pk(3); mf(2); a("s_nop 0"); mf(3)
        if ci + R < 16:
            issue(ci + R)

    a("s_nop 7")
    E = RB
    for r in range(4):
        for c in range(4):
            a0, a1 = SO + 4*c + r, SO + 16 + 4*c + r
            x, y = E + 4*r + c, E + 16 + 4*r + c
            a(f"v_cndmask_b32 {vr(x)}, {vr(a0)}, {vr(a1)}, s[68:69]")
            a(f"v_cndmask_b32 {vr(y)}, {vr(a1)}, {vr(a0)}, s[68:69]")
    for r in range(4):
        for c in range(4):
            x = E + 4*r + c
            a(f"v_sub_f32 {vr(x)}, {vr(x)}, {vr(eZ)}")
    for r in range(4):
        for c in range(4):
            x, y = E + 4*r + c, E + 16 + 4*r + c
            a(f"v_add_f32_dpp {vr(x)}, {vr(y)}, {vr(x)} row_ror:8 row_mask:0xf bank_mask:0xf")
        a(f"ds_write_b128 {vr(eW)}, {vr(E+4*r,4)} offset:{LDS_O + 16*r}")
    a("s_lshl_b32 s5, s3, 5")
    a(f"v_mov_b32 {vr(T)}, s5")
    a("s_waitcnt lgkmcnt(0)")
    a("s_barrier")
    F = RB + 32
    for w in range(8):
        a(f"ds_read_b64 {vr(F+2*w,2)}, {vr(eR)} offset:{LDS_O + w*WSTR}")
    a(f"ds_read_b128 {vr(F+16,4)}, {vr(T)} offset:{LDS_L}")
    a(f"ds_read_b128 {vr(F+20,4)}, {vr(T)} offset:{LDS_L+16}")
    a(f"v_readlane_b32 s5, {vr(vK)}, s3")
    a("s_waitcnt lgkmcnt(0)")
    a(f"v_add_f32 {vr(F+16)}, {vr(F+16)}, {vr(F+17)}")
    a(f"v_add_f32 {vr(F+18)}, {vr(F+18)}, {vr(F+19)}")
    a(f"v_add_f32 {vr(F+20)}, {vr(F+20)}, {vr(F+21)}")
    a(f"v_add_f32 {vr(F+22)}, {vr(F+22)}, {vr(F+23)}")
    a(f"v_add_f32 {vr(F+16)}, {vr(F+16)}, {vr(F+18)}")
    a(f"v_add_f32 {vr(F+20)}, {vr(F+20)}, {vr(F+22)}")
    a(f"v_add_f32 {vr(F+16)}, {vr(F+16)}, {vr(F+20)}")
    a(f"v_rcp_f32 {vr(F+17)}, {vr(F+16)}")
    a(f"v_log_f32 {vr(F+18)}, {vr(F+16)}")
    for s in (4, 2, 1):
        for w in range(s):
            a(f"v_pk_add_f32 {vr(F+2*w,2)}, {vr(F+2*w,2)}, {vr(F+2*(w+s),2)}")
    a(f"v_mul_f32 {vr(F+24)}, {vr(F)}, {vr(F+17)}")
    a(f"v_mul_f32 {vr(F+25)}, {vr(F+1)}, {vr(F+17)}")
    a(f"v_add_f32 {vr(F+26)}, s5, {vr(F+18)}")
    a(f"v_mov_b32 {vr(F+27)}, 0")
    a.vmem(f"buffer_store_dwordx4 {vr(F+24,4)}, {vr(eG)}, {sr(sWS,4)}, 0 offen", "st")
    a.label("L_main_end")
    a("s_endpgm")
    lds = LDS_O + 8 * WSTR
    return a.text(), nvgpr, lds

def gen_combine(o, kname):
    a = Asm()
    a.label(kname)
    a("s_cmp_ge_u32 s2, 256")
    a("s_cbranch_scc1 L_comb_end")
    a("s_load_dwordx2 s[8:9], s[0:1], 72")
    a("s_load_dwordx2 s[12:13], s[0:1], 56")
    a("s_mov_b32 s10, 0x20000000")
    a("s_mov_b32 s11, 0x20000")
    a("s_mov_b32 s14, 16384")
    a("s_mov_b32 s15, 0x20000")
    a("v_and_b32 v1, 31, v0")
    a("v_lshlrev_b32 v1, 13, v1")
    a("v_lshrrev_b32 v2, 5, v0")
    a("v_lshl_add_u32 v1, v2, 4, v1")
    a("s_lshr_b32 s3, s2, 5")
    a("s_lshl_b32 s3, s3, 18")
    a("s_and_b32 s4, s2, 31")
    a("s_lshl_b32 s5, s4, 8")
    a("s_add_u32 s3, s3, s5")
    a("s_lshl_b32 s5, s2, 6")
    a("v_lshlrev_b32 v2, 2, v2")
    a("s_waitcnt lgkmcnt(0)")
    a("buffer_load_dwordx4 v[4:7], v1, s[8:11], s3 offen")
    a("s_waitcnt vmcnt(0)")
    emit_reduce(a, 4, 8)
    a("v_and_b32 v3, 31, v0")
    a("v_cmp_eq_u32 vcc, 0, v3")
    a("s_and_saveexec_b64 s[16:17], vcc")
    a("buffer_store_dword v8, v2, s[12:15], s5 offen")
    a.label("L_comb_end")
    a("s_endpgm")
    return a.text(), 16

def emit_reduce(a, g, t):
    o0, o1, ls = g, g + 1, g + 2
    m, w = t, t + 1
    def allred(op, x, tmp):
        for mod in ("quad_perm:[1,0,3,2]", "quad_perm:[2,3,0,1]", "row_half_mirror", "row_mirror"):
            a("s_nop 1")
            a(f"{op}_dpp {vr(x)}, {vr(x)}, {vr(x)} {mod} row_mask:0xf bank_mask:0xf")
        a(f"v_mov_b32 {vr(tmp)}, {vr(x)}")
        a("s_nop 1")
        a(f"v_permlane16_swap_b32 {vr(x)}, {vr(tmp)}")
        a("s_nop 1")
        a(f"{op} {vr(x)}, {vr(x)}, {vr(tmp)}")
    a(f"v_mov_b32 {vr(m)}, {vr(ls)}")
    allred("v_max_f32", m, t + 2)
    a(f"v_sub_f32 {vr(w)}, {vr(ls)}, {vr(m)}")
    a(f"v_exp_f32 {vr(w)}, {vr(w)}")
    a("s_nop 0")
    a(f"v_mul_f32 {vr(o0)}, {vr(o0)}, {vr(w)}")
    a(f"v_mul_f32 {vr(o1)}, {vr(o1)}, {vr(w)}")
    for mod in ("quad_perm:[1,0,3,2]", "quad_perm:[2,3,0,1]", "row_half_mirror", "row_mirror"):
        for x in (w, o0, o1):
            a(f"v_add_f32_dpp {vr(x)}, {vr(x)}, {vr(x)} {mod} row_mask:0xf bank_mask:0xf")
    tm = {w: t + 2, o0: t + 3, o1: ls}
    for x in (w, o0, o1):
        a(f"v_mov_b32 {vr(tm[x])}, {vr(x)}")
    a("s_nop 1")
    for x in (w, o0, o1):
        a(f"v_permlane16_swap_b32 {vr(x)}, {vr(tm[x])}")
    a("s_nop 1")
    for x in (w, o0, o1):
        a(f"v_add_f32 {vr(x)}, {vr(x)}, {vr(tm[x])}")
    a(f"v_rcp_f32 {vr(w)}, {vr(w)}")
    a("s_nop 0")
    a(f"v_mul_f32 {vr(o0)}, {vr(o0)}, {vr(w)}")
    a(f"v_mul_f32 {vr(o1)}, {vr(o1)}, {vr(w)}")
    a(f"v_cvt_pk_bf16_f32 {vr(t)}, {vr(o0)}, {vr(o1)}")

def kd(name, nvgpr, nsgpr):
    acc = (nvgpr + 3) // 4 * 4
    return f""".amdhsa_kernel {name}
  .amdhsa_next_free_vgpr {nvgpr}
  .amdhsa_next_free_sgpr {nsgpr}
  .amdhsa_accum_offset {acc}
  .amdhsa_group_segment_fixed_size 0
  .amdhsa_kernarg_size 80
  .amdhsa_user_sgpr_count 2
  .amdhsa_user_sgpr_kernarg_segment_ptr 1
  .amdhsa_system_sgpr_workgroup_id_x 1
.end_amdhsa_kernel
"""

def main():
    ap = argparse.ArgumentParser()
    ap.add_argument("-o", default="/dev/stdout")
    ap.add_argument("--ring", type=int, default=5)
    ap.add_argument("--nt", type=int, default=0)
    ap.add_argument("--klayout", type=int, default=0)
    ap.add_argument("--map", type=int, default=0)
    o = ap.parse_args()
    k1 = NAME + "_kernel"
    k2 = "combine_kernel"
    body1, nv1, lds1 = gen_main(o, k1)
    body2, nv2 = gen_combine(o, k2)
    s = HEADER
    s += f"; @launch kernel={k1} grid=(256,1,1) block=(512,1,1) lds={lds1}\n"
    s += f"; @launch kernel={k2} grid=(256,1,1) block=(512,1,1) lds=0\n"
    s += '.amdgcn_target "amdgcn-amd-amdhsa--gfx950"\n.text\n'
    for k, body in ((k1, body1), (k2, body2)):
        s += f".globl {k}\n.p2align 8\n.type {k},@function\n{body}"
    s += "    .fill 256, 4, 0xbf800000\n" if False else ""
    s += '.section .rodata,"a"\n.p2align 6\n'
    s += kd(k1, 256 if o.ring >= 5 else max(nv1, 176), 80)
    s += ".p2align 6\n"
    s += kd(k2, nv2, 24)
    open(o.o, "w").write(s)

main()
```

```python
import sys, math, struct, argparse

NAME = "standalone__kv_cache_quant_int4_int2_kv_with_per_channel_or_per_token_scales__decode"

HEADER = """; Kernarg layout for this problem (80 bytes, ptrs only, base s[0:1]):
"""

def f32bits(x):
    return struct.unpack("<I", struct.pack("<f", x))[0]

class Asm:
    def __init__(self):
        self.lines = []
        self.vm = []
        self.done = -1
    def __call__(self, s):
        self.lines.append("    " + s)
    def label(self, s):
        self.lines.append(s + ":")
    def comment(self, s):
        self.lines.append("    ; " + s)
    def vmem(self, s, tag):
        self(s)
        self.vm.append(tag)
        assert len(self.vm) - 1 - self.done <= 63, "too many VMEM in flight"
    def wait_vm(self, tags):
        last = max(i for i, t in enumerate(self.vm) if t in tags)
        if last <= self.done:
            return
        n = len(self.vm) - 1 - last
        assert n <= 63
        self.done = last
        self(f"s_waitcnt vmcnt({n})")
    def text(self):
        return "\n".join(self.lines) + "\n"

def vr(a, n=1):
    return f"v{a}" if n == 1 else f"v[{a}:{a+n-1}]"
def sr(a, n=1):
    return f"s{a}" if n == 1 else f"s[{a}:{a+n-1}]"

def gen_main(o, kname):
    R = o.ring
    nt = " nt" if o.nt else ""
    a = Asm()
    QP, SO, VS, VZ, CZ, T = 0, 16, 48, 64, 80, 84
    vK, vV, vM, vX = 92, 93, 94, 95
    RB = 96
    nvgpr = RB + 32 * R
    assert nvgpr <= 256
    sK, sV, sQ, sKS, sKZ, sVS, sVZ, sWS = 36, 40, 44, 48, 52, 56, 60, 64
    sW, sT0, sSm, sPair, sPerm, sC1, sHi = 4, 6, 10, 11, 12, 13, 14
    c1 = (128.0 ** -0.5) * math.log2(math.e)

    nst = [0]
    def stamp():
        if o.stamp:
            a(f"s_memrealtime s[{72+2*nst[0]}:{73+2*nst[0]}]")
            nst[0] += 1
    a.label(kname)
    a("s_cmp_ge_u32 s2, 256")
    a("s_cbranch_scc1 L_main_end")
    stamp()
    a(f"s_load_dwordx2 {sr(sK,2)}, s[0:1], 8")
    a("s_load_dwordx16 s[16:31], s[0:1], 0")
    a("s_load_dwordx4 s[32:35], s[0:1], 64")
    a(f"v_lshrrev_b32 v1, 6, v0")
    a(f"v_and_b32 v2, 15, v0")
    a(f"v_readfirstlane_b32 s3, v1")
    a(f"v_bfe_u32 v3, v0, 4, 2")
    a(f"s_mov_b32 {sr(sK+2)}, 0x8000000")
    a(f"s_mov_b32 {sr(sK+3)}, 0x20000")
    a(f"v_lshrrev_b32 v4, 2, v2")
    a(f"v_lshlrev_b32 v4, 12, v4")
    a(f"v_and_b32 v5, 3, v2")
    a(f"v_lshl_add_u32 v4, v5, 9, v4")
    if o.klayout == 0:
        a(f"v_lshl_add_u32 {vr(vK)}, v3, 5, v4")
    else:
        a(f"v_lshl_add_u32 {vr(vK)}, v3, 4, v4")
    if o.map == 0:
        a(f"s_lshl_b32 {sr(sW)}, s2, 3")
        a(f"s_add_u32 {sr(sW)}, {sr(sW)}, s3")
    elif o.map == 1:
        a(f"s_lshr_b32 s5, s2, 5")
        a(f"s_lshl_b32 s5, s5, 8")
        a(f"s_lshl_b32 {sr(sW)}, s3, 5")
        a(f"s_add_u32 {sr(sW)}, {sr(sW)}, s5")
        a(f"s_and_b32 s5, s2, 31")
        a(f"s_add_u32 {sr(sW)}, {sr(sW)}, s5")
    a(f"s_lshl_b32 {sr(sT0)}, {sr(sW)}, 16")
    a(f"s_add_u32 {sr(sT0+1)}, {sr(sT0)}, 0x4000")
    a(f"s_add_u32 {sr(sT0+2)}, {sr(sT0)}, 0x8000")
    a(f"s_add_u32 {sr(sT0+3)}, {sr(sT0)}, 0xc000")
    a(f"s_lshl_b32 {sr(sSm)}, {sr(sW)}, 8")
    a(f"s_lshr_b32 {sr(sPair)}, {sr(sW)}, 8")
    a(f"s_lshl_b32 {sr(sPair)}, {sr(sPair)}, 11")
    a(f"v_lshlrev_b32 v4, 4, v2")
    a(f"v_lshl_add_u32 {vr(vV)}, v3, 12, v4")
    if o.klayout == 0:
        a(f"v_lshlrev_b32 {vr(vX)}, 4, v3")
        a(f"v_and_b32 v5, 7, v2")
        a(f"v_lshl_add_u32 {vr(T)}, v5, 8, {vr(vX)}")
    else:
        a(f"v_lshlrev_b32 {vr(vX)}, 4, v3")
        a(f"v_lshlrev_b32 {vr(T+1)}, 3, v3")
        a(f"v_and_b32 v5, 7, v2")
        a(f"v_lshl_add_u32 {vr(T)}, v5, 8, {vr(T+1)}")
    a(f"v_lshrrev_b32 v5, 3, v2")
    a(f"v_sub_u32 v5, 0, v5")
    a(f"v_lshlrev_b32 {vr(vM)}, 16, v5")
    a(f"s_mov_b32 {sr(sPerm)}, 0x07060302")
    a(f"s_mov_b32 {sr(sC1)}, 0x{f32bits(c1):08x}")
    a(f"s_mov_b32 {sr(sHi)}, 0xffff0000")
    a("s_waitcnt lgkmcnt(0)")
    stamp()

    chunks = [("K", i) for i in range(8)] + [("V", i) for i in range(8)]
    def buf(ci):
        return RB + 32 * (ci % R)
    def issue(ci):
        kind, idx = chunks[ci]
        b = buf(ci)
        if kind == "K":
            j, u = idx >> 1, idx & 1
            for m in range(4):
                for h in range(2):
                    off = u * 2048 + m * 128 + (h * 16 if o.klayout == 0 else h * 64)
                    a.vmem(f"buffer_load_dwordx4 {vr(b + 8*m + 4*h, 4)}, {vr(vK)}, {sr(sK,4)}, {sr(sT0+j)} offen offset:{off}{nt}", ("c", ci))
        else:
            j, half = idx >> 1, idx & 1
            for e in range(8):
                off = e * 512 + half * 256
                a.vmem(f"buffer_load_dwordx4 {vr(b + 4*e, 4)}, {vr(vV)}, {sr(sV,4)}, {sr(sT0+j)} offen offset:{off}{nt}", ("c", ci))

    issue(0)
    def srd(d, p, size):
        a(f"s_mov_b32 {sr(d)}, {sr(p)}")
        a(f"s_mov_b32 {sr(d+1)}, {sr(p+1)}")
        a(f"s_mov_b32 {sr(d+2)}, 0x{size:x}")
        a(f"s_mov_b32 {sr(d+3)}, 0x20000")
    srd(sQ, 16, 16384)
    srd(sKS, 22, 524288)
    srd(sKZ, 24, 524288)
    if o.klayout == 0:
        for m in range(4):
            a.vmem(f"buffer_load_dwordx4 {vr(QP+4*m,4)}, {vr(T)}, {sr(sQ,4)}, {sr(sPair)} offen offset:{m*64}", "q")
        for m in range(4):
            a.vmem(f"buffer_load_dwordx4 {vr(SO+4*m,4)}, {vr(vX)}, {sr(sKS,4)}, {sr(sSm)} offen offset:{m*64}", "q")
        for m in range(4):
            a.vmem(f"buffer_load_dwordx4 {vr(SO+16+4*m,4)}, {vr(vX)}, {sr(sKZ,4)}, {sr(sSm)} offen offset:{m*64}", "q")
    else:
        for m in range(4):
            for h in range(2):
                a.vmem(f"buffer_load_dwordx2 {vr(QP+4*m+2*h,2)}, {vr(T)}, {sr(sQ,4)}, {sr(sPair)} offen offset:{m*64+h*32}", "q")
        for m in range(4):
            for h in range(2):
                a.vmem(f"buffer_load_dwordx2 {vr(SO+4*m+2*h,2)}, {vr(T+1)}, {sr(sKS,4)}, {sr(sSm)} offen offset:{m*64+h*32}", "q")
        for m in range(4):
            for h in range(2):
                a.vmem(f"buffer_load_dwordx2 {vr(SO+16+4*m+2*h,2)}, {vr(T+1)}, {sr(sKZ,4)}, {sr(sSm)} offen offset:{m*64+h*32}", "q")
    nfirst = R if o.klayout == 0 else min(R, 4)
    for ci in range(1, nfirst):
        issue(ci)
    srd(sV, 20, 0x8000000)
    srd(sVS, 26, 524288)
    srd(sVZ, 28, 524288)
    srd(sWS, 34, 0x20000000)
    def issue_vsz():
        for j in range(4):
            a.vmem(f"buffer_load_dwordx4 {vr(VS+4*j,4)}, {vr(vX)}, {sr(sVS,4)}, {sr(sSm)} offen offset:{j*64}", "vs")
        for j in range(4):
            a.vmem(f"buffer_load_dwordx4 {vr(VZ+4*j,4)}, {vr(vX)}, {sr(sVZ,4)}, {sr(sSm)} offen offset:{j*64}", "vs")
    if o.klayout == 0:
        issue_vsz()

    stamp()
    a.wait_vm({"q"})
    stamp()
    if o.klayout != 0:
        for ci in range(nfirst, R):
            issue(ci)
        issue_vsz()
    for k in range(16):
        q, s = QP + k, SO + k
        t0, t1, t2, t3 = T + 4*(k & 1), T + 4*(k & 1) + 1, T + 4*(k & 1) + 2, T + 4*(k & 1) + 3
        a(f"v_lshlrev_b32 {vr(t0)}, 16, {vr(q)}")
        a(f"v_lshlrev_b32 {vr(t1)}, 16, {vr(s)}")
        a(f"v_and_b32 {vr(t2)}, {sr(sHi)}, {vr(q)}")
        a(f"v_and_b32 {vr(t3)}, {sr(sHi)}, {vr(s)}")
        a(f"v_mul_f32 {vr(t0)}, {vr(t0)}, {vr(t1)}")
        a(f"v_mul_f32 {vr(t2)}, {vr(t2)}, {vr(t3)}")
        a(f"v_and_b32 {vr(t1)}, {vr(vM)}, {vr(t0)}")
        a(f"v_and_b32 {vr(t3)}, {vr(vM)}, {vr(t2)}")
        a(f"v_sub_f32 {vr(t0)}, {vr(t0)}, {vr(t1)}")
        a(f"v_sub_f32 {vr(t2)}, {vr(t2)}, {vr(t3)}")
        a(f"v_perm_b32 {vr(q)}, {vr(t2)}, {vr(t0)}, {sr(sPerm)}")
    a("s_nop 1")
    for m in range(4):
        c = "0" if m == 0 else vr(CZ, 4)
        a(f"v_mfma_f32_16x16x32_bf16 {vr(CZ,4)}, {vr(SO+16+4*m,4)}, {vr(QP+4*m,4)}, {c}")
    a("s_nop 7")
    for r in range(4):
        a(f"v_sub_f32 {vr(CZ+r)}, 0, {vr(CZ+r)}")

    for ci in range(8):
        b = buf(ci)
        a.wait_vm({("c", ci)})
        for x in range(32):
            a(f"v_cvt_f32_i32 {vr(b+x)}, {vr(b+x)}")
        for m in range(4):
            for k in range(4):
                a(f"v_cvt_pk_bf16_f32 {vr(b+8*m+k)}, {vr(b+8*m+2*k)}, {vr(b+8*m+2*k+1)}")
        for m in range(4):
            c = vr(CZ, 4) if m == 0 else vr(SO + 4*ci, 4)
            a(f"v_mfma_f32_16x16x32_bf16 {vr(SO+4*ci,4)}, {vr(b+8*m,4)}, {vr(QP+4*m,4)}, {c}")
        if ci + R < 16:
            issue(ci + R)
        if ci >= 1:
            for r in range(4):
                x = SO + 4*(ci-1) + r
                a(f"v_add_f32_dpp {vr(x)}, {vr(x)}, {vr(x)} row_ror:8 row_mask:0xf bank_mask:0xf")
    a("s_nop 7")
    for r in range(4):
        x = SO + 28 + r
        a(f"v_add_f32_dpp {vr(x)}, {vr(x)}, {vr(x)} row_ror:8 row_mask:0xf bank_mask:0xf")

    stamp()
    m0, m1 = T, T + 1
    a(f"v_max3_f32 {vr(m0)}, {vr(SO)}, {vr(SO+1)}, {vr(SO+2)}")
    a(f"v_max3_f32 {vr(m1)}, {vr(SO+3)}, {vr(SO+4)}, {vr(SO+5)}")
    x = 6
    while x < 32:
        a(f"v_max3_f32 {vr(m0)}, {vr(m0)}, {vr(SO+x)}, {vr(SO+x+1)}")
        if x + 2 < 32:
            a(f"v_max3_f32 {vr(m1)}, {vr(m1)}, {vr(SO+x+2)}, {vr(SO+x+3)}")
        x += 4
    a(f"v_max_f32 {vr(m0)}, {vr(m0)}, {vr(m1)}")
    a(f"v_mov_b32 {vr(m1)}, {vr(m0)}")
    a("s_nop 1")
    a(f"v_permlane32_swap_b32 {vr(m0)}, {vr(m1)}")
    a("s_nop 1")
    a(f"v_max_f32 {vr(m0)}, {vr(m0)}, {vr(m1)}")
    a(f"v_mov_b32 {vr(m1)}, {vr(m0)}")
    a("s_nop 1")
    a(f"v_permlane16_swap_b32 {vr(m0)}, {vr(m1)}")
    a("s_nop 1")
    a(f"v_max_f32 {vr(m0)}, {vr(m0)}, {vr(m1)}")
    LDS_M, LDS_L, LDS_O = 0, 256, 512
    HS, WSTR = 528, 528 * 8
    a(f"v_mbcnt_lo_u32_b32 {vr(T+2)}, -1, 0")
    a(f"v_mbcnt_hi_u32_b32 {vr(T+2)}, -1, {vr(T+2)}")
    a(f"v_and_b32 {vr(T+3)}, 7, {vr(T+2)}")
    a(f"v_lshlrev_b32 {vr(T+3)}, 5, {vr(T+3)}")
    a(f"s_lshl_b32 s5, s3, 2")
    a(f"v_add_u32 {vr(vX)}, s5, {vr(T+3)}")
    a(f"ds_write_b32 {vr(vX)}, {vr(m0)} offset:{LDS_M}")
    a("s_waitcnt lgkmcnt(0)")
    a("s_barrier")
    a(f"ds_read_b128 {vr(T+4,4)}, {vr(T+3)} offset:{LDS_M}")
    a(f"ds_read_b128 {vr(CZ,4)}, {vr(T+3)} offset:{LDS_M+16}")
    a("s_waitcnt lgkmcnt(0)")
    a(f"v_max3_f32 {vr(m0)}, {vr(T+4)}, {vr(T+5)}, {vr(T+6)}")
    a(f"v_max3_f32 {vr(m1)}, {vr(T+7)}, {vr(CZ)}, {vr(CZ+1)}")
    a(f"v_max3_f32 {vr(m0)}, {vr(m0)}, {vr(CZ+2)}, {vr(CZ+3)}")
    a(f"v_max_f32 {vr(m0)}, {vr(m0)}, {vr(m1)}")
    a(f"v_mul_f32 {vr(vK)}, {sr(sC1)}, {vr(m0)}")
    assert 8 - 1 + R >= 8
    for x in range(32):
        a(f"v_fma_f32 {vr(SO+x)}, {vr(SO+x)}, {sr(sC1)}, -{vr(vK)}")
    for x in range(32):
        a(f"v_exp_f32 {vr(SO+x)}, {vr(SO+x)}")
    l0, l1 = T, T + 1
    a(f"v_add_f32 {vr(l0)}, {vr(SO)}, {vr(SO+1)}")
    a(f"v_add_f32 {vr(l1)}, {vr(SO+2)}, {vr(SO+3)}")
    for x in range(4, 32, 2):
        a(f"v_add_f32 {vr(l0)}, {vr(l0)}, {vr(SO+x)}")
        a(f"v_add_f32 {vr(l1)}, {vr(l1)}, {vr(SO+x+1)}")
    a(f"v_add_f32 {vr(l0)}, {vr(l0)}, {vr(l1)}")
    a(f"v_mov_b32 {vr(l1)}, {vr(l0)}")
    a("s_nop 1")
    a(f"v_permlane32_swap_b32 {vr(l0)}, {vr(l1)}")
    a("s_nop 1")
    a(f"v_add_f32 {vr(l0)}, {vr(l0)}, {vr(l1)}")
    a(f"v_mov_b32 {vr(l1)}, {vr(l0)}")
    a("s_nop 1")
    a(f"v_permlane16_swap_b32 {vr(l0)}, {vr(l1)}")
    a("s_nop 1")
    a(f"v_add_f32 {vr(l0)}, {vr(l0)}, {vr(l1)}")
    a(f"ds_write_b32 {vr(vX)}, {vr(l0)} offset:{LDS_L}")
    a.wait_vm({"vs"})
    for k in range(16):
        p0, p1 = SO + 2*k, SO + 2*k + 1
        t0, t1 = T + 2*(k & 3), T + 2*(k & 3) + 1
        a(f"v_lshlrev_b32 {vr(t0)}, 16, {vr(VS+k)}")
        a(f"v_and_b32 {vr(t1)}, {sr(sHi)}, {vr(VS+k)}")
        a(f"v_mul_f32 {vr(p0)}, {vr(p0)}, {vr(t0)}")
        a(f"v_mul_f32 {vr(p1)}, {vr(p1)}, {vr(t1)}")
        a(f"v_and_b32 {vr(t0)}, {vr(vM)}, {vr(p0)}")
        a(f"v_and_b32 {vr(t1)}, {vr(vM)}, {vr(p1)}")
        a(f"v_sub_f32 {vr(p0)}, {vr(p0)}, {vr(t0)}")
        a(f"v_sub_f32 {vr(p1)}, {vr(p1)}, {vr(t1)}")
        a(f"v_perm_b32 {vr(QP+k)}, {vr(p1)}, {vr(p0)}, {sr(sPerm)}")
    a("s_nop 1")
    for j in range(4):
        c = "0" if j == 0 else vr(CZ, 4)
        a(f"v_mfma_f32_16x16x32_bf16 {vr(CZ,4)}, {vr(VZ+4*j,4)}, {vr(QP+4*j,4)}, {c}")
    eLane, eW, eR, eG, eZ = VS, VS + 1, VS + 2, VS + 3, VS + 4
    a(f"v_mbcnt_lo_u32_b32 {vr(eLane)}, -1, 0")
    a(f"v_mbcnt_hi_u32_b32 {vr(eLane)}, -1, {vr(eLane)}")
    a(f"v_and_b32 {vr(eW)}, 7, {vr(eLane)}")
    a(f"v_mul_u32_u24 {vr(eW)}, {HS}, {vr(eW)}")
    a(f"v_bfe_u32 {vr(eR)}, {vr(eLane)}, 3, 1")
    a(f"v_lshl_add_u32 {vr(eW)}, {vr(eR)}, 8, {vr(eW)}")
    a(f"v_lshrrev_b32 {vr(eR)}, 4, {vr(eLane)}")
    a(f"v_lshl_add_u32 {vr(eW)}, {vr(eR)}, 6, {vr(eW)}")
    a(f"s_mul_i32 s5, s3, {WSTR}")
    a(f"v_add_u32 {vr(eW)}, s5, {vr(eW)}")
    a(f"s_mul_i32 s5, s3, {HS}")
    a(f"v_lshlrev_b32 {vr(eR)}, 3, {vr(eLane)}")
    a(f"v_add_u32 {vr(eR)}, s5, {vr(eR)}")
    a(f"s_lshl_b32 s5, s2, 3")
    a(f"s_add_u32 s5, s5, s3")
    a(f"s_lshl_b32 s5, s5, 10")
    a(f"v_lshlrev_b32 {vr(eG)}, 4, {vr(eLane)}")
    a(f"v_add_u32 {vr(eG)}, s5, {vr(eG)}")
    a(f"v_cmp_ne_u32 s[68:69], 0, {vr(vM)}")
    a("s_nop 3")
    a(f"v_add_f32_dpp {vr(eZ)}, {vr(CZ)}, {vr(CZ)} row_ror:8 row_mask:0xf bank_mask:0xf")

    stamp()
    for idx in range(8):
        ci = 8 + idx
        j, half = idx >> 1, idx & 1
        b = buf(ci)
        a.wait_vm({("c", ci)})
        for x in range(32):
            a(f"v_cvt_f32_i32 {vr(b+x)}, {vr(b+x)}")
        def pk(c):
            t = T + 4 * (c & 1)
            for p in range(4):
                a(f"v_cvt_pk_bf16_f32 {vr(t+p)}, {vr(b+8*p+c)}, {vr(b+8*p+4+c)}")
        def mf(c):
            t = T + 4 * (c & 1)
            acc = SO + 16*half + 4*c
            cc = "0" if j == 0 else vr(acc, 4)
            a(f"v_mfma_f32_16x16x32_bf16 {vr(acc,4)}, {vr(t,4)}, {vr(QP+4*j,4)}, {cc}")
        pk(0); pk(1); mf(0); pk(2); mf(1); pk(3); mf(2); a("s_nop 0"); mf(3)
        if ci + R < 16:
            issue(ci + R)

    stamp()
    a("s_nop 7")
    E = RB
    for r in range(4):
        for c in range(4):
            a0, a1 = SO + 4*c + r, SO + 16 + 4*c + r
            x, y = E + 4*r + c, E + 16 + 4*r + c
            a(f"v_cndmask_b32 {vr(x)}, {vr(a0)}, {vr(a1)}, s[68:69]")
            a(f"v_cndmask_b32 {vr(y)}, {vr(a1)}, {vr(a0)}, s[68:69]")
    for r in range(4):
        for c in range(4):
            x = E + 4*r + c
            a(f"v_sub_f32 {vr(x)}, {vr(x)}, {vr(eZ)}")
    for r in range(4):
        for c in range(4):
            x, y = E + 4*r + c, E + 16 + 4*r + c
            a(f"v_add_f32_dpp {vr(x)}, {vr(y)}, {vr(x)} row_ror:8 row_mask:0xf bank_mask:0xf")
        a(f"ds_write_b128 {vr(eW)}, {vr(E+4*r,4)} offset:{LDS_O + 16*r}")
    a("s_lshl_b32 s5, s3, 5")
    a(f"v_mov_b32 {vr(T)}, s5")
    a("s_waitcnt lgkmcnt(0)")
    a("s_barrier")
    F = RB + 32
    for w in range(8):
        a(f"ds_read_b64 {vr(F+2*w,2)}, {vr(eR)} offset:{LDS_O + w*WSTR}")
    a(f"ds_read_b128 {vr(F+16,4)}, {vr(T)} offset:{LDS_L}")
    a(f"ds_read_b128 {vr(F+20,4)}, {vr(T)} offset:{LDS_L+16}")
    a(f"v_readlane_b32 s5, {vr(vK)}, s3")
    a("s_waitcnt lgkmcnt(0)")
    a(f"v_add_f32 {vr(F+16)}, {vr(F+16)}, {vr(F+17)}")
    a(f"v_add_f32 {vr(F+18)}, {vr(F+18)}, {vr(F+19)}")
    a(f"v_add_f32 {vr(F+20)}, {vr(F+20)}, {vr(F+21)}")
    a(f"v_add_f32 {vr(F+22)}, {vr(F+22)}, {vr(F+23)}")
    a(f"v_add_f32 {vr(F+16)}, {vr(F+16)}, {vr(F+18)}")
    a(f"v_add_f32 {vr(F+20)}, {vr(F+20)}, {vr(F+22)}")
    a(f"v_add_f32 {vr(F+16)}, {vr(F+16)}, {vr(F+20)}")
    a(f"v_rcp_f32 {vr(F+17)}, {vr(F+16)}")
    a(f"v_log_f32 {vr(F+18)}, {vr(F+16)}")
    for s in (4, 2, 1):
        for w in range(s):
            a(f"v_pk_add_f32 {vr(F+2*w,2)}, {vr(F+2*w,2)}, {vr(F+2*(w+s),2)}")
    a(f"v_mul_f32 {vr(F+24)}, {vr(F)}, {vr(F+17)}")
    a(f"v_mul_f32 {vr(F+25)}, {vr(F+1)}, {vr(F+17)}")
    a(f"v_add_f32 {vr(F+26)}, s5, {vr(F+18)}")
    a(f"v_mov_b32 {vr(F+27)}, 0")
    a.vmem(f"buffer_store_dwordx4 {vr(F+24,4)}, {vr(eG)}, {sr(sWS,4)}, 0 offen", "st")
    if o.stamp:
        stamp()
        a("s_waitcnt lgkmcnt(0)")
        a("s_getreg_b32 s5, hwreg(HW_REG_XCC_ID)")
        a("s_lshl_b32 s4, s2, 3")
        a("s_add_u32 s4, s4, s3")
        a("s_lshl_b32 s4, s4, 6")
        a("s_add_u32 s4, s4, 0x4000000")
        for i in range(8):
            a(f"v_mov_b32 v{i}, s{72+2*i}")
        a("v_mov_b32 v8, s5")
        a("v_mov_b32 v12, 0")
        a("s_mov_b64 exec, 1")
        a(f"buffer_store_dwordx4 v[0:3], v12, {sr(sWS,4)}, s4 offen")
        a(f"buffer_store_dwordx4 v[4:7], v12, {sr(sWS,4)}, s4 offen offset:16")
        a(f"buffer_store_dword v8, v12, {sr(sWS,4)}, s4 offen offset:32")
    a.label("L_main_end")
    a("s_endpgm")
    lds = LDS_O + 8 * WSTR
    return a.text(), nvgpr, lds

def gen_combine(o, kname):
    a = Asm()
    a.label(kname)
    a("s_cmp_ge_u32 s2, 256")
    a("s_cbranch_scc1 L_comb_end")
    a("s_load_dwordx2 s[8:9], s[0:1], 72")
    a("s_load_dwordx2 s[12:13], s[0:1], 56")
    a("s_mov_b32 s10, 0x20000000")
    a("s_mov_b32 s11, 0x20000")
    a("s_mov_b32 s14, 16384")
    a("s_mov_b32 s15, 0x20000")
    a("v_and_b32 v1, 31, v0")
    a("v_lshlrev_b32 v1, 13, v1")
    a("v_lshrrev_b32 v2, 5, v0")
    a("v_lshl_add_u32 v1, v2, 4, v1")
    a("s_lshr_b32 s3, s2, 5")
    a("s_lshl_b32 s3, s3, 18")
    a("s_and_b32 s4, s2, 31")
    a("s_lshl_b32 s5, s4, 8")
    a("s_add_u32 s3, s3, s5")
    a("s_lshl_b32 s5, s2, 6")
    a("v_lshlrev_b32 v2, 2, v2")
    a("s_waitcnt lgkmcnt(0)")
    a("buffer_load_dwordx4 v[4:7], v1, s[8:11], s3 offen")
    a("s_waitcnt vmcnt(0)")
    emit_reduce(a, 4, 8)
    a("v_and_b32 v3, 31, v0")
    a("v_cmp_eq_u32 vcc, 0, v3")
    a("s_and_saveexec_b64 s[16:17], vcc")
    a("buffer_store_dword v8, v2, s[12:15], s5 offen")
    a.label("L_comb_end")
    a("s_endpgm")
    return a.text(), 16

def emit_reduce(a, g, t):
    o0, o1, ls = g, g + 1, g + 2
    m, w = t, t + 1
    def allred(op, x, tmp):
        for mod in ("quad_perm:[1,0,3,2]", "quad_perm:[2,3,0,1]", "row_half_mirror", "row_mirror"):
            a("s_nop 1")
            a(f"{op}_dpp {vr(x)}, {vr(x)}, {vr(x)} {mod} row_mask:0xf bank_mask:0xf")
        a(f"v_mov_b32 {vr(tmp)}, {vr(x)}")
        a("s_nop 1")
        a(f"v_permlane16_swap_b32 {vr(x)}, {vr(tmp)}")
        a("s_nop 1")
        a(f"{op} {vr(x)}, {vr(x)}, {vr(tmp)}")
    a(f"v_mov_b32 {vr(m)}, {vr(ls)}")
    allred("v_max_f32", m, t + 2)
    a(f"v_sub_f32 {vr(w)}, {vr(ls)}, {vr(m)}")
    a(f"v_exp_f32 {vr(w)}, {vr(w)}")
    a("s_nop 0")
    a(f"v_mul_f32 {vr(o0)}, {vr(o0)}, {vr(w)}")
    a(f"v_mul_f32 {vr(o1)}, {vr(o1)}, {vr(w)}")
    for mod in ("quad_perm:[1,0,3,2]", "quad_perm:[2,3,0,1]", "row_half_mirror", "row_mirror"):
        for x in (w, o0, o1):
            a(f"v_add_f32_dpp {vr(x)}, {vr(x)}, {vr(x)} {mod} row_mask:0xf bank_mask:0xf")
    tm = {w: t + 2, o0: t + 3, o1: ls}
    for x in (w, o0, o1):
        a(f"v_mov_b32 {vr(tm[x])}, {vr(x)}")
    a("s_nop 1")
    for x in (w, o0, o1):
        a(f"v_permlane16_swap_b32 {vr(x)}, {vr(tm[x])}")
    a("s_nop 1")
    for x in (w, o0, o1):
        a(f"v_add_f32 {vr(x)}, {vr(x)}, {vr(tm[x])}")
    a(f"v_rcp_f32 {vr(w)}, {vr(w)}")
    a("s_nop 0")
    a(f"v_mul_f32 {vr(o0)}, {vr(o0)}, {vr(w)}")
    a(f"v_mul_f32 {vr(o1)}, {vr(o1)}, {vr(w)}")
    a(f"v_cvt_pk_bf16_f32 {vr(t)}, {vr(o0)}, {vr(o1)}")

def kd(name, nvgpr, nsgpr):
    acc = min(256, (nvgpr + 3) // 4 * 4)
    return f""".amdhsa_kernel {name}
  .amdhsa_next_free_vgpr {nvgpr}
  .amdhsa_next_free_sgpr {nsgpr}
  .amdhsa_accum_offset {acc}
  .amdhsa_group_segment_fixed_size 0
  .amdhsa_kernarg_size 80
  .amdhsa_user_sgpr_count 2
  .amdhsa_user_sgpr_kernarg_segment_ptr 1
  .amdhsa_system_sgpr_workgroup_id_x 1
.end_amdhsa_kernel
"""

def main():
    ap = argparse.ArgumentParser()
    ap.add_argument("-o", default="/dev/stdout")
    ap.add_argument("--ring", type=int, default=5)
    ap.add_argument("--nt", type=int, default=0)
    ap.add_argument("--klayout", type=int, default=0)
    ap.add_argument("--map", type=int, default=0)
    ap.add_argument("--stamp", type=int, default=0)
    o = ap.parse_args()
    k1 = NAME + "_kernel"
    k2 = "combine_kernel"
    body1, nv1, lds1 = gen_main(o, k1)
    body2, nv2 = gen_combine(o, k2)
    s = HEADER
    s += f"; @launch kernel={k1} grid=(256,1,1) block=(512,1,1) lds={lds1}\n"
    s += f"; @launch kernel={k2} grid=(256,1,1) block=(512,1,1) lds=0\n"
    s += '.amdgcn_target "amdgcn-amd-amdhsa--gfx950"\n.text\n'
    for k, body in ((k1, body1), (k2, body2)):
        s += f".globl {k}\n.p2align 8\n.type {k},@function\n{body}"
    s += "    .fill 256, 4, 0xbf800000\n" if False else ""
    s += '.section .rodata,"a"\n.p2align 6\n'
    s += kd(k1, 256 if o.ring >= 5 else max(nv1, 176), 96)
    s += ".p2align 6\n"
    s += kd(k2, nv2, 24)
    open(o.o, "w").write(s)

if __name__ == "__main__":
    main()
```

```python
import sys, math, struct, argparse
from gen import HEADER, NAME, Asm, vr, sr, f32bits, kd, gen_combine, emit_reduce

DPP = "row_mask:0xf bank_mask:0xf"

def gen_main(o, kname):
    R = o.ring
    nt = " nt" if o.nt else ""
    a = Asm()
    QP, SO, VS, VZ, CZ, T, KF = 0, 16, 48, 64, 80, 84, 100
    vKa, vKb, vV, vW, vR, vM, vS8, vG8 = 108, 109, 110, 111, 112, 113, 114, 115
    RB = 116
    nvgpr = RB + 32 * R
    assert nvgpr <= 256
    sK, sV, sQ, sKS, sKZ, sVS, sVZ, sWS = 36, 40, 44, 48, 52, 56, 60, 64
    sA = 4
    sPerm, sC1, sHi, sPair = 12, 13, 14, 15
    sT1, sT2, sT3 = 68, 69, 70
    sMask = 88
    c1 = (128.0 ** -0.5) * math.log2(math.e)
    RS = 288
    WREG = 16 * RS
    LDS_M = 8 * WREG
    LDS_L = LDS_M + 256
    HS = 528
    bits = o.bits.split(",")
    assert len(bits) == 11
    cbit = {int(b[1]): 13 + i for i, b in enumerate(bits) if b[0] == "c"}
    share = cbit[0] < 16 and cbit[1] >= 16 and cbit[2] >= 16

    nst = [0]
    def stamp():
        if o.stamp:
            a(f"s_memrealtime s[{72+2*nst[0]}:{73+2*nst[0]}]")
            nst[0] += 1
    a.label(kname)
    a("s_cmp_ge_u32 s2, 256")
    a("s_cbranch_scc1 L_main_end")
    stamp()
    a(f"s_load_dwordx2 {sr(sK,2)}, s[0:1], 8")
    a("s_load_dwordx16 s[16:31], s[0:1], 0")
    a("s_load_dwordx4 s[32:35], s[0:1], 64")
    a(f"v_lshrrev_b32 v1, 6, v0")
    a(f"v_and_b32 v2, 63, v0")
    a(f"v_readfirstlane_b32 s3, v1")
    a(f"v_lshlrev_b32 {vr(vKa)}, 4, v2")
    a(f"v_add_u32 {vr(vKb)}, 0x1000, {vr(vKa)}")
    a(f"s_mov_b32 {sr(sK+2)}, 0x8000000")
    a(f"s_mov_b32 {sr(sK+3)}, 0x20000")
    if o.xp == 0:
        a(f"s_lshr_b32 {sr(sPair)}, s2, 5"); a(f"s_and_b32 {sr(sT1)}, s2, 31")
    else:
        a(f"s_and_b32 {sr(sPair)}, s2, 7"); a(f"s_lshr_b32 {sr(sT1)}, s2, 3")
    a(f"s_lshl_b32 {sr(sA)}, {sr(sPair)}, 24")
    i = 0
    while i < 11:
        b = bits[i]
        if b[0] == "c":
            i += 1; continue
        src, sh = {"w": ("s3", int(b[1:]) if len(b) > 1 else 0), "b": ("s3", 2), "g": (sr(sT1), int(b[1:]) if len(b) > 1 else 0)}[b[0]]
        n = 1
        while i + n < 11 and bits[i+n][0] != "c":
            bb = bits[i+n]
            s2_, sh2 = {"w": ("s3", int(bb[1:]) if len(bb) > 1 else 0), "b": ("s3", 2), "g": (sr(sT1), int(bb[1:]) if len(bb) > 1 else 0)}[bb[0]]
            if s2_ == src and sh2 == sh + n:
                n += 1
            else:
                break
        a(f"s_bfe_u32 {sr(sT2)}, {src}, 0x{(n << 16) | sh:x}")
        a(f"s_lshl_b32 {sr(sT2)}, {sr(sT2)}, {13 + i}")
        a(f"s_or_b32 {sr(sA)}, {sr(sA)}, {sr(sT2)}")
        i += n
    def coff(c):
        return sum(((c >> k) & 1) << cbit[k] for k in range(3))
    a("s_waitcnt lgkmcnt(0)")
    stamp()

    def buf(ci):
        return RB + 32 * (ci % R)
    def issue_big(ci):
        b = buf(ci)
        if ci < 8:
            for n in range(8):
                va = vKa if n < 4 else vKb
                a.vmem(f"buffer_load_dwordx4 {vr(b + 4*n, 4)}, {vr(va)}, {sr(sK,4)}, {sr(sA+ci)} offen offset:{(n&3)*1024}{nt}", ("c", ci))
        else:
            c = ci - 8
            for half in range(2):
                for e in range(4):
                    a.vmem(f"buffer_load_dwordx4 {vr(b + 16*half + 4*e, 4)}, {vr(vV)}, {sr(sV,4)}, {sr(sA+c)} offen offset:{e*512+half*256}{nt}", ("c", ci))
    def issue_ks(c):
        if share and (c & 1):
            return
        a(f"s_lshr_b32 {sr(sT2)}, {sr(sA+c)}, 16")
        a(f"s_lshl_b32 {sr(sT2)}, {sr(sT2)}, 8")
        a.vmem(f"buffer_load_dwordx2 {vr(SO+4*c,2)}, {vr(vS8)}, {sr(sKS,4)}, {sr(sT2)} offen", ("ks", c))
        a.vmem(f"buffer_load_dwordx2 {vr(SO+4*c+2,2)}, {vr(vS8)}, {sr(sKZ,4)}, {sr(sT2)} offen", ("ks", c))
    def issue_vs(c):
        a(f"s_lshr_b32 {sr(sT3)}, {sr(sA+c)}, 8")
        a.vmem(f"buffer_load_dwordx2 {vr(VS+2*c,2)}, {vr(vG8)}, {sr(sVS,4)}, {sr(sT3)} offen", "vs")
        a.vmem(f"buffer_load_dwordx2 {vr(VZ+2*c,2)}, {vr(vG8)}, {sr(sVZ,4)}, {sr(sT3)} offen", "vs")
    def srd(d, p, size):
        a(f"s_mov_b32 {sr(d)}, {sr(p)}")
        a(f"s_mov_b32 {sr(d+1)}, {sr(p+1)}")
        a(f"s_mov_b32 {sr(d+2)}, 0x{size:x}")
        a(f"s_mov_b32 {sr(d+3)}, 0x20000")

    issue_big(0)
    for c in range(1, 8):
        a(f"s_add_u32 {sr(sA+c)}, {sr(sA)}, 0x{coff(c):x}")
    a(f"v_and_b32 v3, 31, v2")
    a(f"v_lshlrev_b32 {vr(vS8)}, 3, v3")
    a(f"v_lshrrev_b32 v4, 4, v2")
    a(f"v_lshlrev_b32 {vr(vG8)}, 3, v4")
    a(f"v_and_b32 v5, 15, v2")
    a(f"v_lshlrev_b32 v6, 4, v5")
    a(f"v_lshl_add_u32 {vr(vV)}, v4, 11, v6")
    a(f"v_and_b32 v6, 7, v2")
    a(f"v_lshlrev_b32 v6, 8, v6")
    a(f"v_lshl_add_u32 {vr(T)}, v4, 4, v6")
    a(f"s_mul_i32 {sr(sT1)}, s3, {WREG}")
    a(f"v_lshrrev_b32 v6, 5, v2")
    a(f"v_mul_u32_u24 v6, {RS}, v6")
    a(f"v_add3_u32 {vr(vW)}, v6, {vr(vS8)}, {sr(sT1)}")
    a(f"v_mul_u32_u24 v6, {RS}, v5")
    a(f"v_lshl_add_u32 v6, v4, 4, v6")
    a(f"v_add_u32 {vr(vR)}, {sr(sT1)}, v6")
    a(f"v_lshrrev_b32 v6, 3, v5")
    a(f"v_sub_u32 v6, 0, v6")
    a(f"v_lshlrev_b32 {vr(vM)}, 16, v6")
    srd(sKS, 22, 524288)
    srd(sKZ, 24, 524288)
    srd(sQ, 16, 16384)
    issue_ks(0)
    a(f"s_lshl_b32 {sr(sT3)}, {sr(sPair)}, 11")
    for m in range(4):
        a.vmem(f"buffer_load_dwordx4 {vr(QP+4*m,4)}, {vr(T)}, {sr(sQ,4)}, {sr(sT3)} offen offset:{m*64}", "q")
    for ci in range(1, R):
        issue_ks(ci)
        issue_big(ci)
    srd(sV, 20, 0x8000000)
    srd(sVS, 26, 524288)
    srd(sVZ, 28, 524288)
    srd(sWS, 34, 0x20000000)
    a(f"s_mov_b32 {sr(sPerm)}, 0x07060302")
    a(f"s_mov_b32 {sr(sC1)}, 0x{f32bits(c1):08x}")
    a(f"s_mov_b32 {sr(sHi)}, 0xffff0000")
    a(f"v_cmp_ne_u32 {sr(sMask,2)}, 0, {vr(vM)}")
    stamp()

    for c in range(8):
        b = buf(c)
        a.wait_vm({("c", c), ("ks", c)})
        if c == 0:
            stamp()
        if not (share and (c & 1)):
            s0 = SO + 4*c
            a(f"v_lshlrev_b32 {vr(KF)}, 16, {vr(s0)}")
            a(f"v_and_b32 {vr(KF+1)}, {sr(sHi)}, {vr(s0)}")
            a(f"v_lshlrev_b32 {vr(KF+2)}, 16, {vr(s0+1)}")
            a(f"v_and_b32 {vr(KF+3)}, {sr(sHi)}, {vr(s0+1)}")
            a(f"v_lshlrev_b32 {vr(KF+4)}, 16, {vr(s0+2)}")
            a(f"v_and_b32 {vr(KF+5)}, {sr(sHi)}, {vr(s0+2)}")
            a(f"v_lshlrev_b32 {vr(KF+6)}, 16, {vr(s0+3)}")
            a(f"v_and_b32 {vr(KF+7)}, {sr(sHi)}, {vr(s0+3)}")
            for k in range(4):
                a(f"v_mul_f32 {vr(KF+4+k)}, -{vr(KF+4+k)}, {vr(KF+k)}")
        for n in range(8):
            x = b + 4*n
            for k in range(4):
                a(f"v_cvt_f32_i32 {vr(x+k)}, {vr(x+k)}")
            if o.pk:
                a(f"v_pk_fma_f32 {vr(x,2)}, {vr(x,2)}, {vr(KF,2)}, {vr(KF+4,2)}")
                a(f"v_pk_fma_f32 {vr(x+2,2)}, {vr(x+2,2)}, {vr(KF+2,2)}, {vr(KF+6,2)}")
            else:
                for k in range(4):
                    a(f"v_fma_f32 {vr(x+k)}, {vr(x+k)}, {vr(KF+k)}, {vr(KF+4+k)}")
            a(f"v_cvt_pk_bf16_f32 {vr(x)}, {vr(x)}, {vr(x+1)}")
            a(f"v_cvt_pk_bf16_f32 {vr(x+1)}, {vr(x+2)}, {vr(x+3)}")
            a(f"ds_write_b64 {vr(vW)}, {vr(x,2)} offset:{n*2*RS}")
        for m in range(4):
            a(f"ds_read_b128 {vr(T+4*m,4)}, {vr(vR)} offset:{m*64}")
        nx = c + R
        if nx < 8:
            issue_ks(nx)
        if c < 4:
            assert nx <= 8 or c + R < 8 or True
            issue_vs(2*c); issue_vs(2*c+1)
        issue_big(nx)
        if c == 0:
            a.wait_vm({"q"})
        for m in range(4):
            a(f"s_waitcnt lgkmcnt({3-m})")
            cc = "0" if m == 0 else vr(SO + 4*c, 4)
            a(f"v_mfma_f32_16x16x32_bf16 {vr(SO+4*c,4)}, {vr(T+4*m,4)}, {vr(QP+4*m,4)}, {cc}")
    stamp()
    m0, m1 = T, T + 1
    a(f"v_max3_f32 {vr(m0)}, {vr(SO)}, {vr(SO+1)}, {vr(SO+2)}")
    a(f"v_max3_f32 {vr(m1)}, {vr(SO+3)}, {vr(SO+4)}, {vr(SO+5)}")
    x = 6
    while x < 32:
        a(f"v_max3_f32 {vr(m0)}, {vr(m0)}, {vr(SO+x)}, {vr(SO+x+1)}")
        if x + 2 < 32:
            a(f"v_max3_f32 {vr(m1)}, {vr(m1)}, {vr(SO+x+2)}, {vr(SO+x+3)}")
        x += 4
    def xlane(op, x0, x1):
        a(f"{op} {vr(x0)}, {vr(x0)}, {vr(x1)}")
        a(f"v_mov_b32 {vr(x1)}, {vr(x0)}")
        a("s_nop 1")
        a(f"v_permlane32_swap_b32 {vr(x0)}, {vr(x1)}")
        a("s_nop 1")
        a(f"{op} {vr(x0)}, {vr(x0)}, {vr(x1)}")
        a(f"v_mov_b32 {vr(x1)}, {vr(x0)}")
        a("s_nop 1")
        a(f"v_permlane16_swap_b32 {vr(x0)}, {vr(x1)}")
        a("s_nop 1")
        a(f"{op} {vr(x0)}, {vr(x0)}, {vr(x1)}")
    xlane("v_max_f32", m0, m1)
    vMx = KF
    a(f"v_mul_f32 {vr(vMx)}, {sr(sC1)}, {vr(m0)}")
    for x in range(32):
        a(f"v_fma_f32 {vr(SO+x)}, {vr(SO+x)}, {sr(sC1)}, -{vr(vMx)}")
    for x in range(32):
        a(f"v_exp_f32 {vr(SO+x)}, {vr(SO+x)}")
    l0, l1 = T, T + 1
    a(f"v_add_f32 {vr(l0)}, {vr(SO)}, {vr(SO+1)}")
    a(f"v_add_f32 {vr(l1)}, {vr(SO+2)}, {vr(SO+3)}")
    for x in range(4, 32, 2):
        a(f"v_add_f32 {vr(l0)}, {vr(l0)}, {vr(SO+x)}")
        a(f"v_add_f32 {vr(l1)}, {vr(l1)}, {vr(SO+x+1)}")
    xlane("v_add_f32", l0, l1)
    eLane, eW, eR, eG, eZ, eML = KF+1, KF+2, KF+3, KF+4, KF+5, KF+6
    a(f"v_mbcnt_lo_u32_b32 {vr(eLane)}, -1, 0")
    a(f"v_mbcnt_hi_u32_b32 {vr(eLane)}, -1, {vr(eLane)}")
    a(f"v_and_b32 {vr(T+2)}, 7, {vr(eLane)}")
    a(f"v_lshlrev_b32 {vr(T+3)}, 5, {vr(T+2)}")
    a(f"s_lshl_b32 {sr(sT1)}, s3, 2")
    a(f"v_add_u32 {vr(T+3)}, {sr(sT1)}, {vr(T+3)}")
    a(f"ds_write_b32 {vr(T+3)}, {vr(vMx)} offset:{LDS_M}")
    a(f"ds_write_b32 {vr(T+3)}, {vr(l0)} offset:{LDS_L}")
    a(f"v_mul_u32_u24 {vr(eW)}, {HS}, {vr(T+2)}")
    a(f"v_bfe_u32 {vr(eR)}, {vr(eLane)}, 3, 1")
    a(f"v_lshl_add_u32 {vr(eW)}, {vr(eR)}, 8, {vr(eW)}")
    a(f"v_lshrrev_b32 {vr(eR)}, 4, {vr(eLane)}")
    a(f"v_lshl_add_u32 {vr(eW)}, {vr(eR)}, 6, {vr(eW)}")
    a(f"s_mul_i32 {sr(sT1)}, s3, {WREG}")
    a(f"v_add_u32 {vr(eW)}, {sr(sT1)}, {vr(eW)}")
    a(f"s_mul_i32 {sr(sT1)}, s3, {HS}")
    a(f"v_lshlrev_b32 {vr(eR)}, 3, {vr(eLane)}")
    a(f"v_add_u32 {vr(eR)}, {sr(sT1)}, {vr(eR)}")
    if o.xp == 0:
        a(f"s_lshl_b32 {sr(sT1)}, s2, 3")
    else:
        a(f"s_lshl_b32 {sr(sT1)}, {sr(sPair)}, 5")
        a(f"s_lshr_b32 {sr(sT2)}, s2, 3")
        a(f"s_add_u32 {sr(sT1)}, {sr(sT1)}, {sr(sT2)}")
        a(f"s_lshl_b32 {sr(sT1)}, {sr(sT1)}, 3")
    a(f"s_add_u32 {sr(sT1)}, {sr(sT1)}, s3")
    a(f"s_lshl_b32 {sr(sT1)}, {sr(sT1)}, 10")
    a(f"v_lshlrev_b32 {vr(eG)}, 4, {vr(eLane)}")
    a(f"v_add_u32 {vr(eG)}, {sr(sT1)}, {vr(eG)}")
    a(f"s_lshl_b32 {sr(sT1)}, s3, 5")
    a(f"v_mov_b32 {vr(eML)}, {sr(sT1)}")
    a.wait_vm({"vs"})
    for k in range(16):
        p0, p1 = SO + 2*k, SO + 2*k + 1
        t0, t1 = T + 4 + 2*(k & 3), T + 4 + 2*(k & 3) + 1
        a(f"v_lshlrev_b32 {vr(t0)}, 16, {vr(VS+k)}")
        a(f"v_and_b32 {vr(t1)}, {sr(sHi)}, {vr(VS+k)}")
        a(f"v_mul_f32 {vr(p0)}, {vr(p0)}, {vr(t0)}")
        a(f"v_mul_f32 {vr(p1)}, {vr(p1)}, {vr(t1)}")
        a(f"v_and_b32 {vr(t0)}, {vr(vM)}, {vr(p0)}")
        a(f"v_and_b32 {vr(t1)}, {vr(vM)}, {vr(p1)}")
        a(f"v_sub_f32 {vr(p0)}, {vr(p0)}, {vr(t0)}")
        a(f"v_sub_f32 {vr(p1)}, {vr(p1)}, {vr(t1)}")
        a(f"v_perm_b32 {vr(QP+k)}, {vr(p1)}, {vr(p0)}, {sr(sPerm)}")
    a("s_nop 1")
    for j in range(4):
        cc = "0" if j == 0 else vr(CZ, 4)
        a(f"v_mfma_f32_16x16x32_bf16 {vr(CZ,4)}, {vr(VZ+4*j,4)}, {vr(QP+4*j,4)}, {cc}")
    a("s_nop 7")
    a(f"v_add_f32_dpp {vr(eZ)}, {vr(CZ)}, {vr(CZ)} row_ror:8 {DPP}")
    stamp()

    for c in range(8):
        ci = 8 + c
        b = buf(ci)
        for half in range(2):
            if o.vsplit:
                idxs = [i for i, t in enumerate(a.vm) if t == ("c", ci)]
                last = idxs[3] if half == 0 else idxs[7]
                if last > a.done:
                    a(f"s_waitcnt vmcnt({len(a.vm)-1-last})")
                    a.done = last
            else:
                a.wait_vm({("c", ci)})
            h = b + 16*half
            for x in range(16):
                a(f"v_cvt_f32_i32 {vr(h+x)}, {vr(h+x)}")
            for cc in range(4):
                t = T + 8*half + 2*cc
                a(f"v_cvt_pk_bf16_f32 {vr(t)}, {vr(h+cc)}, {vr(h+4+cc)}")
                a(f"v_cvt_pk_bf16_f32 {vr(t+1)}, {vr(h+8+cc)}, {vr(h+12+cc)}")
            for cc in range(4):
                t = T + 8*half + 2*cc
                acc = SO + 16*half + 4*cc
                cin = "0" if c == 0 else vr(acc, 4)
                if cc == 3:
                    pass
                a(f"v_mfma_f32_16x16x16_bf16 {vr(acc,4)}, {vr(t,2)}, {vr(QP+2*c,2)}, {cin}")
        if ci + R < 16:
            issue_big(ci + R)
    stamp()

    E = RB
    a("s_nop 4")
    for cc in range(4):
        for r in range(4):
            a0, a1 = SO + 4*cc + r, SO + 16 + 4*cc + r
            x, y = E + 4*r + cc, E + 16 + 4*r + cc
            a(f"v_cndmask_b32 {vr(x)}, {vr(a0)}, {vr(a1)}, {sr(sMask,2)}")
            a(f"v_cndmask_b32 {vr(y)}, {vr(a1)}, {vr(a0)}, {sr(sMask,2)}")
    for r in range(4):
        for cc in range(4):
            x = E + 4*r + cc
            a(f"v_sub_f32 {vr(x)}, {vr(x)}, {vr(eZ)}")
    for r in range(4):
        for cc in range(4):
            x, y = E + 4*r + cc, E + 16 + 4*r + cc
            a(f"v_add_f32_dpp {vr(x)}, {vr(y)}, {vr(x)} row_ror:8 {DPP}")
        a(f"ds_write_b128 {vr(eW)}, {vr(E+4*r,4)} offset:{16*r}")
    a("s_waitcnt lgkmcnt(0)")
    a("s_barrier")
    F = RB + 32
    Mr, Lr = F + 16, F + 24
    a(f"ds_read_b128 {vr(Mr,4)}, {vr(eML)} offset:{LDS_M}")
    a(f"ds_read_b128 {vr(Mr+4,4)}, {vr(eML)} offset:{LDS_M+16}")
    a(f"ds_read_b128 {vr(Lr,4)}, {vr(eML)} offset:{LDS_L}")
    a(f"ds_read_b128 {vr(Lr+4,4)}, {vr(eML)} offset:{LDS_L+16}")
    for w in range(8):
        a(f"ds_read_b64 {vr(F+2*w,2)}, {vr(eR)} offset:{w*WREG}")
    a("s_waitcnt lgkmcnt(10)")
    G = F + 32
    a(f"v_max3_f32 {vr(G)}, {vr(Mr)}, {vr(Mr+1)}, {vr(Mr+2)}")
    a(f"v_max3_f32 {vr(G+1)}, {vr(Mr+3)}, {vr(Mr+4)}, {vr(Mr+5)}")
    a(f"v_max3_f32 {vr(G)}, {vr(G)}, {vr(Mr+6)}, {vr(Mr+7)}")
    a(f"v_max_f32 {vr(G)}, {vr(G)}, {vr(G+1)}")
    for w in range(8):
        a(f"v_sub_f32 {vr(Mr+w)}, {vr(Mr+w)}, {vr(G)}")
    for w in range(8):
        a(f"v_exp_f32 {vr(Mr+w)}, {vr(Mr+w)}")
    a("s_waitcnt lgkmcnt(8)")
    a(f"v_mul_f32 {vr(G+1)}, {vr(Mr)}, {vr(Lr)}")
    a(f"v_mul_f32 {vr(G+2)}, {vr(Mr+1)}, {vr(Lr+1)}")
    for w in range(2, 8):
        a(f"v_fmac_f32 {vr(G+1+(w&1))}, {vr(Mr+w)}, {vr(Lr+w)}")
    a(f"v_add_f32 {vr(G+1)}, {vr(G+1)}, {vr(G+2)}")
    a(f"v_rcp_f32 {vr(G+2)}, {vr(G+1)}")
    a(f"v_log_f32 {vr(G+3)}, {vr(G+1)}")
    a("s_waitcnt lgkmcnt(0)")
    O = G + 4
    a(f"v_mul_f32 {vr(O)}, {vr(Mr)}, {vr(F)}")
    a(f"v_mul_f32 {vr(O+1)}, {vr(Mr)}, {vr(F+1)}")
    a(f"v_mul_f32 {vr(O+2)}, {vr(Mr+1)}, {vr(F+2)}")
    a(f"v_mul_f32 {vr(O+3)}, {vr(Mr+1)}, {vr(F+3)}")
    for w in range(2, 8):
        k = 2 * (w & 1)
        a(f"v_fmac_f32 {vr(O+k)}, {vr(Mr+w)}, {vr(F+2*w)}")
        a(f"v_fmac_f32 {vr(O+k+1)}, {vr(Mr+w)}, {vr(F+2*w+1)}")
    a(f"v_add_f32 {vr(O)}, {vr(O)}, {vr(O+2)}")
    a(f"v_add_f32 {vr(O+1)}, {vr(O+1)}, {vr(O+3)}")
    a(f"v_mul_f32 {vr(O)}, {vr(O)}, {vr(G+2)}")
    a(f"v_mul_f32 {vr(O+1)}, {vr(O+1)}, {vr(G+2)}")
    a(f"v_add_f32 {vr(O+2)}, {vr(G)}, {vr(G+3)}")
    a(f"v_mov_b32 {vr(O+3)}, 0")
    a.vmem(f"buffer_store_dwordx4 {vr(O,4)}, {vr(eG)}, {sr(sWS,4)}, 0 offen", "st")
    if o.stamp:
        stamp()
        a("s_waitcnt lgkmcnt(0)")
        a("s_getreg_b32 s5, hwreg(HW_REG_XCC_ID)")
        a("s_lshl_b32 s4, s2, 3")
        a("s_add_u32 s4, s4, s3")
        a("s_lshl_b32 s4, s4, 6")
        a("s_add_u32 s4, s4, 0x4000000")
        for i in range(8):
            a(f"v_mov_b32 v{i}, s{72+2*i}")
        a("v_mov_b32 v8, s5")
        a("v_mov_b32 v12, 0")
        a("s_mov_b64 exec, 1")
        a(f"buffer_store_dwordx4 v[0:3], v12, {sr(sWS,4)}, s4 offen")
        a(f"buffer_store_dwordx4 v[4:7], v12, {sr(sWS,4)}, s4 offen offset:16")
        a(f"buffer_store_dword v8, v12, {sr(sWS,4)}, s4 offen offset:32")
    a.label("L_main_end")
    a("s_endpgm")
    lds = LDS_L + 256
    return a.text(), nvgpr, lds

def main():
    ap = argparse.ArgumentParser()
    ap.add_argument("-o", default="/dev/stdout")
    ap.add_argument("--ring", type=int, default=4)
    ap.add_argument("--nt", type=int, default=1)
    ap.add_argument("--bits", default="w0,w1,c0,b,g0,g1,g2,g3,g4,c1,c2")
    ap.add_argument("--xp", type=int, default=0)
    ap.add_argument("--stamp", type=int, default=0)
    ap.add_argument("--pk", type=int, default=1)
    ap.add_argument("--vsplit", type=int, default=1)
    o = ap.parse_args()
    k1 = NAME + "_kernel"
    k2 = "combine_kernel"
    body1, nv1, lds1 = gen_main(o, k1)
    body2, nv2 = gen_combine(o, k2)
    s = HEADER
    s += f"; @launch kernel={k1} grid=(256,1,1) block=(512,1,1) lds={lds1}\n"
    s += f"; @launch kernel={k2} grid=(256,1,1) block=(512,1,1) lds=0\n"
    s += '.amdgcn_target "amdgcn-amd-amdhsa--gfx950"\n.text\n'
    for k, body in ((k1, body1), (k2, body2)):
        s += f".globl {k}\n.p2align 8\n.type {k},@function\n{body}"
    s += '.section .rodata,"a"\n.p2align 6\n'
    s += kd(k1, max(nv1, 176), 96)
    s += ".p2align 6\n"
    s += kd(k2, nv2, 24)
    open(o.o, "w").write(s)

if __name__ == "__main__":
    main()
```

```python
import sys
inp, out, ia, ma, ib, mb, amp = sys.argv[1:8]
ia, ib, amp = int(ia), int(ib), int(amp)
NREC = int(sys.argv[8]) if len(sys.argv) > 8 else 32
K = "standalone__kv_cache_quant_int4_int2_kv_with_per_channel_or_per_token_scales__decode_kernel"
s = open(inp).read()
ls = [x for x in s.splitlines() if x.startswith("; @launch")]
last = ls[-1]
for l in ls:
    if "kernel=" not in l:
        s = s.replace(l, l.replace("@launch grid", f"@launch kernel={K} grid"))
        last = l.replace("@launch grid", f"@launch kernel={K} grid")
s = s.replace(last, last + "\n; @launch kernel=amp_kernel grid=(1,1,1) block=(64,1,1) lds=0")
b = """amp_kernel:
    s_cmp_ge_u32 s2, 1
    s_cbranch_scc1 L_amp_out
    s_load_dwordx2 s[8:9], s[0:1], 72
    s_mov_b32 s10, 0x20000000
    s_mov_b32 s11, 0x20000
    s_mov_b32 s12, 0x4000000
    v_lshlrev_b32 v1, 6, v0
    v_mov_b32 v10, 0
    s_waitcnt lgkmcnt(0)
    buffer_load_dword v2, v10, s[8:11], s12 offen
    s_waitcnt vmcnt(0)
"""
init = {"min": "0x7fffffff", "max": "0x80000000"}
b += f"    v_mov_b32 v3, {init[ma]}\n    v_mov_b32 v4, {init[mb]}\n"
for i in range(NREC):
    b += f"    buffer_load_dword v5, v1, s[8:11], s12 offen offset:{ia*4}\n"
    b += f"    buffer_load_dword v6, v1, s[8:11], s12 offen offset:{ib*4}\n"
    b += "    s_waitcnt vmcnt(0)\n    v_sub_u32 v5, v5, v2\n    v_sub_u32 v6, v6, v2\n"
    b += f"    v_{ma}_i32 v3, v3, v5\n    v_{mb}_i32 v4, v4, v6\n    v_add_u32 v1, 0x1000, v1\n"
b += f"    s_mov_b32 s14, {init[ma]}\n    s_mov_b32 s15, {init[mb]}\n    s_nop 4\n"
for i in range(64):
    b += f"    v_readlane_b32 s16, v3, {i}\n    v_readlane_b32 s17, v4, {i}\n    s_nop 3\n    s_{ma}_i32 s14, s14, s16\n    s_{mb}_i32 s15, s15, s17\n"
b += f"""    s_sub_u32 s14, s15, s14
    s_mul_i32 s14, s14, {amp}
    s_min_u32 s14, s14, 100000
    s_memrealtime s[4:5]
    s_waitcnt lgkmcnt(0)
    s_add_u32 s6, s4, s14
L_amp_spin:
    s_memrealtime s[18:19]
    s_waitcnt lgkmcnt(0)
    s_sub_u32 s20, s6, s18
    s_cmp_gt_i32 s20, 0
    s_cbranch_scc1 L_amp_spin
L_amp_out:
    s_endpgm
"""
kd = """.p2align 6
.amdhsa_kernel amp_kernel
  .amdhsa_next_free_vgpr 16
  .amdhsa_next_free_sgpr 24
  .amdhsa_accum_offset 16
  .amdhsa_group_segment_fixed_size 0
  .amdhsa_kernarg_size 80
  .amdhsa_user_sgpr_count 2
  .amdhsa_user_sgpr_kernarg_segment_ptr 1
  .amdhsa_system_sgpr_workgroup_id_x 1
.end_amdhsa_kernel
"""
s = s.replace('.section .rodata,"a"\n', ".globl amp_kernel\n.p2align 8\n.type amp_kernel,@function\n" + b + '.section .rodata,"a"\n') + kd
open(out, "w").write(s)
```

```python
import sys, math, struct, argparse
from gen import HEADER, NAME, Asm, vr, sr, f32bits, kd

DPP = "row_mask:0xf bank_mask:0xf"
NC = 16

def gen_main(o, kname):
    R = o.ring
    U = o.unit
    nt = " nt"
    a = Asm()
    Q, OX, S, CZ, T, KF, KR = 0, 16, 32, 96, 100, 116, 124
    O = 0
    vKa, vKb, vV, vW, vR, vM, vS8, vG8 = 128, 129, 130, 131, 132, 133, 134, 135
    NV = 136
    PP = 144
    SZ = 148
    RB = 160
    mx0, mx1, vL = 156, 157, 158
    nvgpr = RB + 4 * U * R
    assert nvgpr <= 256, nvgpr
    sK, sV, sQ, sSM, sWS, sDBG, sOUT = 36, 40, 44, 48, 52, 56, 60
    sA = 4
    sB0, sB1 = 5, 6
    sPerm, sC1, sHi, sPair = 12, 13, 14, 15
    sT1, sT2, sT3, sWgp = 64, 65, 66, 67
    sMask = 68
    sNon = 70
    c1 = (128.0 ** -0.5) * math.log2(math.e)
    RS = 288
    WREG = 16 * RS
    LDS_S = 4 * WREG
    LDS_Q = LDS_S + 8192
    LDS_M = LDS_Q + 2048
    LDS_L = LDS_M + 128
    LDS_N = LDS_L + 128
    HS = 528
    def coff(c):
        return ((c & 3) << 15) | ((c >> 2) << 22)

    nst = [0]
    def stamp():
        if o.stamp:
            a(f"s_memrealtime s[{72+2*nst[0]}:{73+2*nst[0]}]")
            nst[0] += 1
    def srd_tail(d, size):
        a(f"s_mov_b32 {sr(d+2)}, 0x{size:x}")
        a(f"s_mov_b32 {sr(d+3)}, 0x20000")

    a.label(kname)
    a("s_cmp_ge_u32 s2, 256")
    a("s_cbranch_scc1 L_main_end")
    stamp()
    a(f"v_lshrrev_b32 v1, 6, v0")
    a(f"s_load_dwordx2 {sr(sK,2)}, s[0:1], 8")
    a(f"v_readfirstlane_b32 s3, v1")
    a(f"s_load_dwordx2 {sr(sQ,2)}, s[0:1], 0")
    a(f"s_load_dwordx2 {sr(sDBG,2)}, s[0:1], 64")
    a(f"v_and_b32 v2, 63, v0")
    a(f"s_lshl_b32 {sr(sT2)}, s3, 3")
    a(f"s_add_u32 {sr(sT2)}, {sr(sT2)}, 24")
    a(f"s_load_dwordx2 {sr(sSM,2)}, s[0:1], {sr(sT2)}")
    a(f"s_memrealtime {sr(sNon,2)}")
    a(f"v_lshlrev_b32 {vr(vKa)}, 4, v2")
    a(f"v_add_u32 {vr(vKb)}, 0x1000, {vr(vKa)}")
    srd_tail(sK, 0x8000000)
    srd_tail(sSM, 524288)
    srd_tail(sQ, 16384)
    srd_tail(sDBG, 256)
    if o.thr >= 0:
        a("s_getreg_b32 s23, hwreg(HW_REG_XCC_ID)")
    a(f"s_lshr_b32 {sr(sPair)}, s2, 5")
    a(f"s_and_b32 {sr(sWgp)}, s2, 31")
    a(f"s_lshl_b32 {sr(sA)}, {sr(sPair)}, 24")
    a(f"s_lshl_b32 {sr(sT2)}, {sr(sWgp)}, 17")
    a(f"s_or_b32 {sr(sA)}, {sr(sA)}, {sr(sT2)}")
    a(f"s_lshr_b32 {sr(sT3)}, {sr(sA)}, 8")
    a(f"s_lshl_b32 {sr(sT2)}, s3, 13")
    a(f"s_or_b32 {sr(sA)}, {sr(sA)}, {sr(sT2)}")
    a(f"v_and_b32 v3, 31, v2")
    a(f"v_lshrrev_b32 v7, 5, v2")
    a(f"v_lshlrev_b32 v6, 14, v7")
    a(f"v_lshl_add_u32 {vr(T)}, v3, 4, v6")
    a(f"v_mov_b32 {vr(NV+1)}, 0")
    a(f"v_mov_b32 {vr(NV+2)}, 0")
    a(f"s_lshl_b32 {sr(sT1)}, s3, 11")
    a(f"s_add_u32 m0, {sr(sT1)}, {LDS_S}")
    a("s_waitcnt lgkmcnt(0)")
    stamp()

    upc = 8 // U
    units = [("K", c, h) for c in range(NC) for h in range(upc)] + [("V", c, h) for c in range(NC) for h in range(upc)]
    def ubuf(ui):
        return RB + 4 * U * (ui % R)
    def issue(ui):
        if ui >= len(units):
            return
        kind, c, h = units[ui]
        b = ubuf(ui)
        if o.thr >= 0 and ui >= o.thr0:
            a("s_bitcmp1_b32 s23, 0")
            a(f"s_cbranch_scc1 L_thr{ui}")
            a(f"s_waitcnt vmcnt({o.thr})")
            a.label(f"L_thr{ui}")
        if c == 0:
            sb = sA
        else:
            sb = sB0 if (ui & 1) == 0 else sB1
            a(f"s_add_u32 {sr(sb)}, {sr(sA)}, 0x{coff(c):x}")
        for i in range(U):
            n = h * U + i
            if kind == "K":
                va = vKa if n < 4 else vKb
                a.vmem(f"buffer_load_dwordx4 {vr(b + 4*i, 4)}, {vr(va)}, {sr(sK,4)}, {sr(sb)} offen offset:{(n&3)*1024}{nt}", (ui, i))
            else:
                half, e = n >> 2, n & 3
                a.vmem(f"buffer_load_dwordx4 {vr(b + 4*i, 4)}, {vr(vV)}, {sr(sV,4)}, {sr(sb)} offen offset:{e*512+half*256}{nt}", (ui, i))
    def reg(kind_base_ui, n):
        return ubuf(kind_base_ui + n // U) + 4 * (n % U)

    def nonce_atomic():
        a(f"s_lshl_b32 {sr(sT1)}, {sr(sPair)}, 5")
        a("s_cmp_lg_u32 s3, 3")
        a("s_cbranch_scc1 L_no_nonce")
        a(f"s_or_b32 {sr(sNon)}, {sr(sNon)}, 1")
        a(f"v_mov_b32 {vr(NV)}, {sr(sNon)}")
        a("s_mov_b64 exec, 1")
        a(f"buffer_atomic_cmpswap {vr(NV,2)}, {vr(NV+2)}, {sr(sDBG,4)}, {sr(sT1)} offen sc0")
        a("s_mov_b64 exec, -1")
        a.label("L_no_nonce")
    if o.nat < 0:
        nonce_atomic()
    if o.kfirst:
        issue(0)
    a.vmem(f"buffer_load_dwordx4 {vr(T)}, {sr(sSM,4)}, {sr(sT3)} offen lds", "sm")
    a(f"s_add_u32 m0, m0, 1024")
    a(f"s_add_u32 {sr(sT3)}, {sr(sT3)}, 0x8000")
    a.vmem(f"buffer_load_dwordx4 {vr(T)}, {sr(sSM,4)}, {sr(sT3)} offen lds", "sm")
    a(f"s_lshl_b32 {sr(sT2)}, s3, 9")
    a(f"s_add_u32 m0, {sr(sT2)}, {LDS_Q}")
    a(f"s_lshl_b32 {sr(sT3)}, {sr(sPair)}, 11")
    a(f"s_add_u32 {sr(sT3)}, {sr(sT3)}, {sr(sT2)}")
    a("s_mov_b32 exec_hi, 0")
    a.vmem(f"buffer_load_dwordx4 {vr(vKa)}, {sr(sQ,4)}, {sr(sT3)} offen lds", "sm")
    a("s_mov_b32 exec_hi, -1")
    npre = min(R, o.pre)
    for ui in range(1 if o.kfirst else 0, npre):
        issue(ui)
    a(f"s_load_dwordx2 {sr(sV,2)}, s[0:1], 16")
    a(f"s_load_dwordx2 {sr(sWS,2)}, s[0:1], 72")
    a(f"s_load_dwordx2 {sr(sOUT,2)}, s[0:1], 56")
    a(f"v_lshrrev_b32 v4, 4, v2")
    a(f"v_and_b32 v5, 15, v2")
    a(f"v_lshlrev_b32 v6, 4, v5")
    a(f"v_lshl_add_u32 {vr(vV)}, v4, 11, v6")
    a(f"v_lshlrev_b32 {vr(vS8)}, 3, v3")
    a(f"s_lshl_b32 {sr(sT1)}, s3, 5")
    a(f"v_lshlrev_b32 v6, 3, v4")
    a(f"v_add_u32 {vr(vG8)}, {sr(sT1)}, v6")
    a(f"v_and_b32 v9, 7, v2")
    a(f"v_lshlrev_b32 v6, 8, v9")
    a(f"v_lshl_add_u32 {vr(T+1)}, v4, 4, v6")
    a(f"s_mul_i32 {sr(sT1)}, s3, {WREG}")
    a(f"v_mul_u32_u24 v6, {RS}, v7")
    a(f"v_add3_u32 {vr(vW)}, v6, {vr(vS8)}, {sr(sT1)}")
    a(f"v_mul_u32_u24 v6, {RS}, v5")
    a(f"v_lshl_add_u32 v6, v4, 4, v6")
    a(f"v_add_u32 {vr(vR)}, {sr(sT1)}, v6")
    a(f"v_lshrrev_b32 v6, 3, v5")
    a(f"v_sub_u32 v6, 0, v6")
    a(f"v_lshlrev_b32 {vr(vM)}, 16, v6")
    srd_tail(sV, 0x8000000)
    srd_tail(sWS, 0x20000000)
    srd_tail(sOUT, 16384)
    a(f"s_mov_b32 {sr(sPerm)}, 0x07060302")
    a(f"s_mov_b32 {sr(sC1)}, 0x{f32bits(c1):08x}")
    a(f"s_mov_b32 {sr(sHi)}, 0xffff0000")
    a(f"v_cmp_ne_u32 {sr(sMask,2)}, 0, {vr(vM)}")
    stamp()
    a.wait_vm({"sm"})
    a("s_barrier")
    for m in range(4):
        a(f"ds_read_b128 {vr(Q+4*m,4)}, {vr(T+1)} offset:{LDS_Q + m*64}")
    def read_ks(c):
        off = (c >> 2) * 512 + ((c >> 1) & 1) * 256
        a(f"ds_read_b64 {vr(KR,2)}, {vr(vS8)} offset:{LDS_S + off}")
        a(f"ds_read_b64 {vr(KR+2,2)}, {vr(vS8)} offset:{LDS_S + 2048 + off}")
    def read_sz(c):
        off = (c >> 2) * 512 + (c & 3) * 128
        z = SZ + 4 * (c & 1)
        a(f"ds_read_b64 {vr(z,2)}, {vr(vG8)} offset:{LDS_S + 4096 + off}")
        a(f"ds_read_b64 {vr(z+2,2)}, {vr(vG8)} offset:{LDS_S + 6144 + off}")
    read_ks(0)
    for ui in range(npre, R):
        issue(ui)

    for c in range(NC):
        u0 = c * upc
        if (c & 1) == 0:
            a("s_waitcnt lgkmcnt(0)")
            a(f"v_lshlrev_b32 {vr(KF)}, 16, {vr(KR)}")
            a(f"v_and_b32 {vr(KF+1)}, {sr(sHi)}, {vr(KR)}")
            a(f"v_lshlrev_b32 {vr(KF+2)}, 16, {vr(KR+1)}")
            a(f"v_and_b32 {vr(KF+3)}, {sr(sHi)}, {vr(KR+1)}")
            a(f"v_lshlrev_b32 {vr(KF+4)}, 16, {vr(KR+2)}")
            a(f"v_and_b32 {vr(KF+5)}, {sr(sHi)}, {vr(KR+2)}")
            a(f"v_lshlrev_b32 {vr(KF+6)}, 16, {vr(KR+3)}")
            a(f"v_and_b32 {vr(KF+7)}, {sr(sHi)}, {vr(KR+3)}")
            for k in range(4):
                a(f"v_mul_f32 {vr(KF+4+k)}, -{vr(KF+4+k)}, {vr(KF+k)}")
        if c >= 2:
            s0 = S + 4*(c-2)
            if c == 2:
                a(f"v_max_f32 {vr(mx0)}, {vr(s0)}, {vr(s0+1)}")
                a(f"v_max_f32 {vr(mx1)}, {vr(s0+2)}, {vr(s0+3)}")
            else:
                a(f"v_max3_f32 {vr(mx0)}, {vr(mx0)}, {vr(s0)}, {vr(s0+1)}")
                a(f"v_max3_f32 {vr(mx1)}, {vr(mx1)}, {vr(s0+2)}, {vr(s0+3)}")
        for n in range(8):
            if n % o.ksub == 0:
                nn = n + o.ksub - 1
                a.wait_vm({(u0 + nn // U, nn % U)})
                if c == 0 and n == 0:
                    stamp()
            x = reg(u0, n)
            for k in range(4):
                a(f"v_cvt_f32_i32 {vr(x+k)}, {vr(x+k)}")
            a(f"v_pk_fma_f32 {vr(x,2)}, {vr(x,2)}, {vr(KF,2)}, {vr(KF+4,2)}")
            a(f"v_pk_fma_f32 {vr(x+2,2)}, {vr(x+2,2)}, {vr(KF+2,2)}, {vr(KF+6,2)}")
            a(f"v_cvt_pk_bf16_f32 {vr(x)}, {vr(x)}, {vr(x+1)}")
            a(f"v_cvt_pk_bf16_f32 {vr(x+1)}, {vr(x+2)}, {vr(x+3)}")
            a(f"ds_write_b64 {vr(vW)}, {vr(x,2)} offset:{n*2*RS}")
            if (n + 1) % U == 0 and n < 7:
                issue(u0 + n // U + R)
        for m in range(4):
            a(f"ds_read_b128 {vr(T+4*m,4)}, {vr(vR)} offset:{m*64}")
        extra = 0
        if (c & 1) and c < NC - 1:
            read_ks(c + 1); extra = 2
        if c == NC - 1:
            read_sz(0); extra = 2
        issue(u0 + upc - 1 + R)
        if c == o.nat:
            nonce_atomic()
        for m in range(4):
            a(f"s_waitcnt lgkmcnt({3-m+extra})")
            cc = "0" if m == 0 else vr(S + 4*c, 4)
            a(f"v_mfma_f32_16x16x32_bf16 {vr(S+4*c,4)}, {vr(T+4*m,4)}, {vr(Q+4*m,4)}, {cc}")
    stamp()
    s0 = S + 4*(NC-2)
    a(f"v_max3_f32 {vr(mx0)}, {vr(mx0)}, {vr(s0)}, {vr(s0+1)}")
    a(f"v_max3_f32 {vr(mx1)}, {vr(mx1)}, {vr(s0+2)}, {vr(s0+3)}")
    eLane, eW, eR, eG, eZ, eML, eH, vMx = KF, KF+1, KF+2, KF+3, KF+4, KF+5, KF+6, KF+7
    a(f"v_mbcnt_lo_u32_b32 {vr(eLane)}, -1, 0")
    a(f"v_mbcnt_hi_u32_b32 {vr(eLane)}, -1, {vr(eLane)}")
    a(f"v_and_b32 {vr(eH)}, 7, {vr(eLane)}")
    a(f"v_mul_u32_u24 {vr(eW)}, {HS}, {vr(eH)}")
    a(f"v_bfe_u32 {vr(eR)}, {vr(eLane)}, 3, 1")
    a(f"v_lshl_add_u32 {vr(eW)}, {vr(eR)}, 8, {vr(eW)}")
    a(f"v_lshrrev_b32 {vr(eR)}, 4, {vr(eLane)}")
    a(f"v_lshl_add_u32 {vr(eW)}, {vr(eR)}, 6, {vr(eW)}")
    s0 = S + 4*(NC-1)
    a(f"v_max3_f32 {vr(mx0)}, {vr(mx0)}, {vr(s0)}, {vr(s0+1)}")
    a(f"v_max3_f32 {vr(mx1)}, {vr(mx1)}, {vr(s0+2)}, {vr(s0+3)}")
    def xlane(op, x0, x1):
        a(f"v_mov_b32 {vr(x1)}, {vr(x0)}")
        a("s_nop 1")
        a(f"v_permlane32_swap_b32 {vr(x0)}, {vr(x1)}")
        a("s_nop 1")
        a(f"{op} {vr(x0)}, {vr(x0)}, {vr(x1)}")
        a(f"v_mov_b32 {vr(x1)}, {vr(x0)}")
        a("s_nop 1")
        a(f"v_permlane16_swap_b32 {vr(x0)}, {vr(x1)}")
        a("s_nop 1")
        a(f"{op} {vr(x0)}, {vr(x0)}, {vr(x1)}")
    a(f"v_max_f32 {vr(mx0)}, {vr(mx0)}, {vr(mx1)}")
    xlane("v_max_f32", mx0, mx1)
    a(f"v_mul_f32 {vr(vMx)}, {sr(sC1)}, {vr(mx0)}")

    def make_p(c):
        s0 = S + 4*c
        z = SZ + 4 * (c & 1)
        p = PP + 2 * (c & 1)
        for r in range(4):
            a(f"v_fma_f32 {vr(s0+r)}, {vr(s0+r)}, {sr(sC1)}, -{vr(vMx)}")
        for r in range(4):
            a(f"v_exp_f32 {vr(s0+r)}, {vr(s0+r)}")
        a("s_waitcnt lgkmcnt(0)")
        a(f"v_lshlrev_b32 {vr(KR)}, 16, {vr(z)}")
        a(f"v_and_b32 {vr(KR+1)}, {sr(sHi)}, {vr(z)}")
        a(f"v_lshlrev_b32 {vr(KR+2)}, 16, {vr(z+1)}")
        a(f"v_and_b32 {vr(KR+3)}, {sr(sHi)}, {vr(z+1)}")
        if c + 1 < NC:
            read_sz(c + 1)
        a(f"v_add_f32 {vr(mx0)}, {vr(s0)}, {vr(s0+1)}")
        a(f"v_add_f32 {vr(mx1)}, {vr(s0+2)}, {vr(s0+3)}")
        for r in range(4):
            a(f"v_mul_f32 {vr(s0+r)}, {vr(s0+r)}, {vr(KR+r)}")
        if c == 0:
            a(f"v_add_f32 {vr(vL)}, {vr(mx0)}, {vr(mx1)}")
        else:
            a(f"v_add_f32 {vr(mx0)}, {vr(mx0)}, {vr(mx1)}")
        for r in range(4):
            a(f"v_and_b32 {vr(KR+r)}, {vr(vM)}, {vr(s0+r)}")
        if c > 0:
            a(f"v_add_f32 {vr(vL)}, {vr(vL)}, {vr(mx0)}")
        for r in range(4):
            a(f"v_sub_f32 {vr(s0+r)}, {vr(s0+r)}, {vr(KR+r)}")
        a(f"v_perm_b32 {vr(p)}, {vr(s0+1)}, {vr(s0)}, {sr(sPerm)}")
        a(f"v_perm_b32 {vr(p+1)}, {vr(s0+3)}, {vr(s0+2)}, {sr(sPerm)}")
        a("s_nop 1")
        cc = "0" if c == 0 else vr(CZ, 4)
        a(f"v_mfma_f32_16x16x16_bf16 {vr(CZ,4)}, {vr(z+2,2)}, {vr(p,2)}, {cc}")
    make_p(0)
    stamp()

    def late_setup():
        a.comment("late setup")
        a(f"s_mul_i32 {sr(sT1)}, s3, {WREG}")
        a(f"v_add_u32 {vr(eW)}, {sr(sT1)}, {vr(eW)}")
        a(f"v_lshrrev_b32 {vr(T)}, 5, {vr(eLane)}")
        a(f"s_lshl_b32 {sr(sT1)}, s3, 1")
        a(f"v_add_u32 {vr(T)}, {sr(sT1)}, {vr(T)}")
        a(f"v_mul_u32_u24 {vr(eR)}, {HS}, {vr(T)}")
        a(f"v_add_u32 {vr(eR)}, {vr(vS8)}, {vr(eR)}")
        a(f"v_lshlrev_b32 {vr(eML)}, 4, {vr(T)}")
        a(f"v_lshlrev_b32 {vr(eG)}, 10, {vr(T)}")
        a(f"v_lshl_add_u32 {vr(eG)}, {vr(vS8)}, 1, {vr(eG)}")
        a(f"s_lshl_b32 s22, s2, 13")
        a("s_cmp_lg_u32 s3, 3")
        a("s_cbranch_scc1 L_no_nonce2")
        a(f"v_readfirstlane_b32 {sr(sT1)}, {vr(NV)}")
        a("s_nop 3")
        a(f"s_cmp_eq_u32 {sr(sT1)}, 0")
        a(f"s_cselect_b32 {sr(sT1)}, {sr(sNon)}, {sr(sT1)}")
        a(f"v_mov_b32 {vr(NV)}, {sr(sT1)}")
        a(f"v_mov_b32 {vr(NV+1)}, 0")
        a(f"ds_write_b32 {vr(NV+1)}, {vr(NV)} offset:{LDS_N}")
        a.label("L_no_nonce2")
        a(f"v_lshrrev_b32 {vr(NV+2)}, 3, {vr(eLane)}")
        a(f"v_lshlrev_b32 {vr(NV+2)}, 13, {vr(NV+2)}")
        a(f"v_lshl_add_u32 {vr(NV+2)}, {vr(eH)}, 4, {vr(NV+2)}")
        a(f"v_lshlrev_b32 {vr(NV+3)}, 2, {vr(eH)}")
        a(f"v_mov_b32 {vr(NV+1)}, 0")
        a(f"v_lshlrev_b32 {vr(NV+4)}, 4, {vr(eH)}")
        a(f"s_lshl_b32 {sr(sT1)}, s3, 2")
        a(f"v_add_u32 {vr(NV+4)}, {sr(sT1)}, {vr(NV+4)}")
        a(f"ds_write_b32 {vr(NV+4)}, {vr(vMx)} offset:{LDS_M}")
        a(f"s_lshl_b32 s16, {sr(sPair)}, 18")
        a(f"s_lshl_b32 s17, {sr(sWgp)}, 9")
        a("s_add_u32 s16, s16, s17")
        a("s_lshl_b32 s17, s3, 7")
        a("s_add_u32 s16, s16, s17")
        a("s_add_u32 s17, s16, 0x10000")
        a("s_add_u32 s18, s16, 0x20000")
        a("s_add_u32 s19, s16, 0x30000")
        a(f"s_lshl_b32 s20, {sr(sPair)}, 11")
        a(f"s_lshl_b32 s21, {sr(sWgp)}, 7")
        a("s_add_u32 s20, s20, s21")
        a("s_lshl_b32 s21, s3, 5")
        a("s_add_u32 s20, s20, s21")
        a("s_mov_b32 s21, 0x40000")

    vu0 = NC * upc
    for c in range(NC):
        u0 = vu0 + c * upc
        p = PP + 2 * (c & 1)
        if c + 1 < NC:
            make_p(c + 1)
        if c == 1:
            late_setup()
        if c == NC - 1:
            a(f"v_mov_b32 {vr(mx0)}, {vr(vL)}")
            xlane("v_add_f32", mx0, mx1)
            a(f"ds_write_b32 {vr(NV+4)}, {vr(mx0)} offset:{LDS_L}")
            a(f"v_add_f32_dpp {vr(eZ)}, {vr(CZ)}, {vr(CZ)} row_ror:8 {DPP}")
        for half in range(2):
            nn = half * 4 + 3
            a.wait_vm({(u0 + nn // U, nn % U)})
            rr = [reg(u0, half * 4 + e) for e in range(4)]
            for e in range(4):
                for k in range(4):
                    a(f"v_cvt_f32_i32 {vr(rr[e]+k)}, {vr(rr[e]+k)}")
            for cc in range(4):
                t = T + 8*half + 2*cc
                a(f"v_cvt_pk_bf16_f32 {vr(t)}, {vr(rr[0]+cc)}, {vr(rr[1]+cc)}")
                a(f"v_cvt_pk_bf16_f32 {vr(t+1)}, {vr(rr[2]+cc)}, {vr(rr[3]+cc)}")
            if U == 4 or half == 1:
                issue(u0 + nn // U + R)
            for cc in range(4):
                t = T + 8*half + 2*cc
                acc = O + 16*half + 4*cc
                cin = "0" if c == 0 else vr(acc, 4)
                a(f"v_mfma_f32_16x16x16_bf16 {vr(acc,4)}, {vr(t,2)}, {vr(p,2)}, {cin}")
    stamp()

    E = S
    a("s_nop 4")
    for cc in range(4):
        for r in range(4):
            a0, a1 = O + 4*cc + r, O + 16 + 4*cc + r
            x, y = E + 4*r + cc, E + 16 + 4*r + cc
            a(f"v_cndmask_b32 {vr(x)}, {vr(a0)}, {vr(a1)}, {sr(sMask,2)}")
            a(f"v_cndmask_b32 {vr(y)}, {vr(a1)}, {vr(a0)}, {sr(sMask,2)}")
    for r in range(4):
        for cc in range(4):
            x = E + 4*r + cc
            a(f"v_sub_f32 {vr(x)}, {vr(x)}, {vr(eZ)}")
    for r in range(4):
        for cc in range(4):
            x, y = E + 4*r + cc, E + 16 + 4*r + cc
            a(f"v_add_f32_dpp {vr(x)}, {vr(y)}, {vr(x)} row_ror:8 {DPP}")
        a(f"ds_write_b128 {vr(eW)}, {vr(E+4*r,4)} offset:{16*r}")
    a("s_waitcnt lgkmcnt(0)")
    a("s_barrier")
    F = 0
    Mr, Lr = F + 16, F + 20
    a(f"ds_read_b128 {vr(Mr,4)}, {vr(eML)} offset:{LDS_M}")
    a(f"ds_read_b128 {vr(Lr,4)}, {vr(eML)} offset:{LDS_L}")
    for w in range(4):
        a(f"ds_read_b64 {vr(F+4*w,2)}, {vr(eR)} offset:{w*WREG}")
        a(f"ds_read_b64 {vr(F+4*w+2,2)}, {vr(eR)} offset:{w*WREG+256}")
    a(f"ds_read_b32 {vr(NV)}, {vr(NV+1)} offset:{LDS_N}")
    a("s_waitcnt lgkmcnt(10)")
    G = F + 24
    a(f"v_max3_f32 {vr(G)}, {vr(Mr)}, {vr(Mr+1)}, {vr(Mr+2)}")
    a(f"v_max_f32 {vr(G)}, {vr(G)}, {vr(Mr+3)}")
    for w in range(4):
        a(f"v_sub_f32 {vr(Mr+w)}, {vr(Mr+w)}, {vr(G)}")
    for w in range(4):
        a(f"v_exp_f32 {vr(Mr+w)}, {vr(Mr+w)}")
    a("s_waitcnt lgkmcnt(9)")
    a(f"v_mul_f32 {vr(G+1)}, {vr(Mr)}, {vr(Lr)}")
    for w in range(1, 4):
        a(f"v_fmac_f32 {vr(G+1)}, {vr(Mr+w)}, {vr(Lr+w)}")
    a(f"v_rcp_f32 {vr(G+2)}, {vr(G+1)}")
    a(f"v_log_f32 {vr(G+3)}, {vr(G+1)}")
    a("s_nop 0")
    for w in range(4):
        a(f"v_mul_f32 {vr(Mr+w)}, {vr(Mr+w)}, {vr(G+2)}")
    O1, O2 = 32, 36
    a(f"v_add_f32 {vr(O1+2)}, {vr(G)}, {vr(G+3)}")
    a(f"v_add_f32 {vr(O2+2)}, {vr(G)}, {vr(G+3)}")
    a("s_waitcnt lgkmcnt(0)")
    dst = [O1, O1+1, O2, O2+1]
    for k in range(4):
        a(f"v_mul_f32 {vr(dst[k])}, {vr(Mr)}, {vr(F+k)}")
    for w in range(1, 4):
        for k in range(4):
            a(f"v_fmac_f32 {vr(dst[k])}, {vr(Mr+w)}, {vr(F+4*w+k)}")
    a(f"v_mov_b32 {vr(O1+3)}, {vr(NV)}")
    a(f"v_mov_b32 {vr(O2+3)}, {vr(NV)}")
    a(f"s_cmp_lt_u32 {sr(sWgp)}, 16")
    a(f"buffer_store_dwordx4 {vr(O1,4)}, {vr(eG)}, {sr(sWS,4)}, s22 offen sc1")
    a(f"buffer_store_dwordx4 {vr(O2,4)}, {vr(eG)}, {sr(sWS,4)}, s22 offen offset:512 sc1")
    a("s_cbranch_scc0 L_fin_done")
    P = 48
    a.label("L_poll")
    for n in range(4):
        a(f"buffer_load_dwordx4 {vr(P+4*n,4)}, {vr(NV+2)}, {sr(sWS,4)}, s{16+n} offen sc1")
    a("s_sub_u32 s21, s21, 1")
    a("s_cbranch_scc1 L_fin_done")
    for n in range(4):
        a(f"s_waitcnt vmcnt({3-n})")
        a(f"v_xor_b32 {vr(P+16+n)}, {vr(P+4*n+3)}, {vr(NV)}")
        a(f"v_xor_b32_dpp {vr(P+20+n)}, {vr(P+4*n+2)}, {vr(P+4*n+2)} quad_perm:[1,0,3,2] {DPP}")
    a(f"v_or3_b32 {vr(P+16)}, {vr(P+16)}, {vr(P+17)}, {vr(P+18)}")
    a(f"v_or3_b32 {vr(P+20)}, {vr(P+20)}, {vr(P+21)}, {vr(P+22)}")
    a(f"v_or3_b32 {vr(P+16)}, {vr(P+16)}, {vr(P+19)}, {vr(P+23)}")
    a(f"v_or_b32 {vr(P+16)}, {vr(P+16)}, {vr(P+20)}")
    a(f"v_cmp_ne_u32 vcc, 0, {vr(P+16)}")
    a(f"v_max3_f32 {vr(P+24)}, {vr(P+2)}, {vr(P+6)}, {vr(P+10)}")
    a(f"v_max_f32 {vr(P+24)}, {vr(P+24)}, {vr(P+14)}")
    a("s_cbranch_vccnz L_poll")
    def xl3(op, xs, ts):
        a("s_nop 1")
        for x in xs:
            a(f"{op}_dpp {vr(x)}, {vr(x)}, {vr(x)} row_ror:8 {DPP}")
        for sw in ("v_permlane16_swap_b32", "v_permlane32_swap_b32"):
            for x, t in zip(xs, ts):
                a(f"v_mov_b32 {vr(t)}, {vr(x)}")
            a("s_nop 1")
            for x, t in zip(xs, ts):
                a(f"{sw} {vr(x)}, {vr(t)}")
            a("s_nop 1")
            for x, t in zip(xs, ts):
                a(f"{op} {vr(x)}, {vr(x)}, {vr(t)}")
    xl3("v_max_f32", [P+24], [P+25])
    for n in range(4):
        a(f"v_sub_f32 {vr(P+4*n+2)}, {vr(P+4*n+2)}, {vr(P+24)}")
    for n in range(4):
        a(f"v_exp_f32 {vr(P+4*n+2)}, {vr(P+4*n+2)}")
    W, A0, A1 = P+26, P+27, P+28
    a(f"v_add_f32 {vr(W)}, {vr(P+2)}, {vr(P+6)}")
    a(f"v_mul_f32 {vr(A0)}, {vr(P+2)}, {vr(P)}")
    a(f"v_mul_f32 {vr(A1)}, {vr(P+2)}, {vr(P+1)}")
    a(f"v_add_f32 {vr(W)}, {vr(W)}, {vr(P+10)}")
    for n in range(1, 4):
        a(f"v_fmac_f32 {vr(A0)}, {vr(P+4*n+2)}, {vr(P+4*n)}")
        a(f"v_fmac_f32 {vr(A1)}, {vr(P+4*n+2)}, {vr(P+4*n+1)}")
    a(f"v_add_f32 {vr(W)}, {vr(W)}, {vr(P+14)}")
    xl3("v_add_f32", [W, A0, A1], [P+29, P+30, P+31])
    a(f"v_rcp_f32 {vr(W)}, {vr(W)}")
    a("s_mov_b64 exec, 0xff")
    a(f"v_mul_f32 {vr(A0)}, {vr(A0)}, {vr(W)}")
    a(f"v_mul_f32 {vr(A1)}, {vr(A1)}, {vr(W)}")
    a(f"v_cvt_pk_bf16_f32 {vr(A0)}, {vr(A0)}, {vr(A1)}")
    a(f"buffer_store_dword {vr(A0)}, {vr(NV+3)}, {sr(sOUT,4)}, s20 offen")
    a("s_mov_b64 exec, -1")
    a.label("L_fin_done")
    if o.stamp:
        stamp()
        a("s_waitcnt lgkmcnt(0)")
        a("s_getreg_b32 s5, hwreg(HW_REG_XCC_ID)")
        a("s_lshl_b32 s4, s2, 2")
        a("s_add_u32 s4, s4, s3")
        a("s_lshl_b32 s4, s4, 6")
        a("s_add_u32 s4, s4, 0x4000000")
        a("s_nop 1")
        for i in range(8):
            a(f"v_mov_b32 v{i}, s{72+2*i}")
        a("v_mov_b32 v8, s5")
        a("v_mov_b32 v12, 0")
        a("s_mov_b64 exec, 1")
        a(f"buffer_store_dwordx4 v[0:3], v12, {sr(sWS,4)}, s4 offen")
        a(f"buffer_store_dwordx4 v[4:7], v12, {sr(sWS,4)}, s4 offen offset:16")
        a(f"buffer_store_dword v8, v12, {sr(sWS,4)}, s4 offen offset:32")
    a.label("L_main_end")
    a("s_endpgm")
    lds = LDS_N + 16
    return a.text(), nvgpr, lds

def main():
    ap = argparse.ArgumentParser()
    ap.add_argument("-o", default="/dev/stdout")
    ap.add_argument("--ring", type=int, default=3)
    ap.add_argument("--unit", type=int, default=8)
    ap.add_argument("--stamp", type=int, default=0)
    ap.add_argument("--ksub", type=int, default=4)
    ap.add_argument("--kfirst", type=int, default=1)
    ap.add_argument("--nat", type=int, default=-1)
    ap.add_argument("--pre", type=int, default=99)
    ap.add_argument("--thr", type=int, default=-1)
    ap.add_argument("--thr0", type=int, default=2)
    ap.add_argument("--ldspad", type=int, default=81920)
    o = ap.parse_args()
    k1 = NAME + "_kernel"
    body1, nv1, lds1 = gen_main(o, k1)
    s = HEADER
    s += f"; @launch grid=(256,1,1) block=(256,1,1) lds={lds1}\n"
    s += '.amdgcn_target "amdgcn-amd-amdhsa--gfx950"\n.text\n'
    s += f".globl {k1}\n.p2align 8\n.type {k1},@function\n{body1}"
    s += '.section .rodata,"a"\n.p2align 6\n'
    s += kd(k1, 264, 96)
    open(o.o, "w").write(s)

if __name__ == "__main__":
    main()
```

```python
import sys, math, struct, argparse
from gen import HEADER, NAME, Asm, vr, sr, f32bits, kd

DPP = "row_mask:0xf bank_mask:0xf"
NC = 16

def gen_main(o, kname):
    R = o.ring
    U = o.unit
    nt = " nt"
    a = Asm()
    Q, OX, S, CZ, T, KF, KR = 0, 16, 32, 96, 100, 116, 124
    O = 0
    vKa, vKb, vV, vW, vR, vM, vS8, vG8 = 128, 129, 130, 131, 132, 133, 134, 135
    NV = 136
    PP = 144
    SZ = 148
    RB = 160
    mx0, mx1, vL, vV2 = 156, 157, 158, 159
    nvgpr = RB + 4 * U * R
    assert nvgpr <= 256, nvgpr
    sK, sV, sQ, sSM, sWS, sDBG, sOUT = 36, 40, 44, 48, 52, 56, 60
    sA = 4
    sB0, sB1 = 5, 6
    sPerm, sC1, sHi, sPair = 12, 13, 14, 15
    sT1, sT2, sT3, sWgp = 64, 65, 66, 67
    sMask = 68
    sNon = 70
    c1 = (128.0 ** -0.5) * math.log2(math.e)
    RS = 288
    WREG = 16 * RS
    LDS_S = 4 * WREG
    LDS_Q = LDS_S + 8192
    LDS_M = LDS_Q + 2048
    LDS_L = LDS_M + 128
    LDS_N = LDS_L + 128
    HS = 528
    def coff(c):
        return ((c & 3) << 15) | ((c >> 2) << 22)

    nst = [0]
    def stamp():
        if o.stamp:
            a(f"s_memrealtime s[{72+2*nst[0]}:{73+2*nst[0]}]")
            nst[0] += 1
    def srd_tail(d, size):
        a(f"s_mov_b32 {sr(d+2)}, 0x{size:x}")
        a(f"s_mov_b32 {sr(d+3)}, 0x20000")

    a.label(kname)
    a("s_cmp_ge_u32 s2, 256")
    a("s_cbranch_scc1 L_main_end")
    stamp()
    a(f"v_lshrrev_b32 v1, 6, v0")
    a(f"s_load_dwordx2 {sr(sK,2)}, s[0:1], 8")
    a(f"v_readfirstlane_b32 s3, v1")
    a(f"s_load_dwordx2 {sr(sQ,2)}, s[0:1], 0")
    a(f"s_load_dwordx2 {sr(sDBG,2)}, s[0:1], 64")
    a(f"v_and_b32 v2, 63, v0")
    a(f"s_lshl_b32 {sr(sT2)}, s3, 3")
    a(f"s_add_u32 {sr(sT2)}, {sr(sT2)}, 24")
    a(f"s_load_dwordx2 {sr(sSM,2)}, s[0:1], {sr(sT2)}")
    a(f"s_memrealtime {sr(sNon,2)}")
    a(f"v_lshlrev_b32 {vr(vKa)}, 4, v2")
    a(f"v_add_u32 {vr(vKb)}, 0x1000, {vr(vKa)}")
    srd_tail(sK, 0x8000000)
    srd_tail(sSM, 524288)
    srd_tail(sQ, 16384)
    srd_tail(sDBG, 256)
    if o.thr >= 0:
        a("s_getreg_b32 s23, hwreg(HW_REG_XCC_ID)")
    a(f"s_lshr_b32 {sr(sPair)}, s2, 5")
    a(f"s_and_b32 {sr(sWgp)}, s2, 31")
    a(f"s_lshl_b32 {sr(sA)}, {sr(sPair)}, 24")
    a(f"s_lshl_b32 {sr(sT2)}, {sr(sWgp)}, 17")
    a(f"s_or_b32 {sr(sA)}, {sr(sA)}, {sr(sT2)}")
    a(f"s_lshr_b32 {sr(sT3)}, {sr(sA)}, 8")
    a(f"s_lshl_b32 {sr(sT2)}, s3, {10 if o.ilv else 13}")
    a(f"s_or_b32 {sr(sA)}, {sr(sA)}, {sr(sT2)}")
    a(f"v_and_b32 v3, 31, v2")
    a(f"v_lshrrev_b32 v7, 5, v2")
    a(f"v_lshlrev_b32 v6, 14, v7")
    a(f"v_lshl_add_u32 {vr(T)}, v3, 4, v6")
    a(f"v_mov_b32 {vr(NV+1)}, 0")
    a(f"v_mov_b32 {vr(NV+2)}, 0")
    a(f"s_lshl_b32 {sr(sT1)}, s3, 11")
    a(f"s_add_u32 m0, {sr(sT1)}, {LDS_S}")
    a("s_waitcnt lgkmcnt(0)")
    stamp()

    upc = 8 // U
    units = [("K", c, h) for c in range(NC) for h in range(upc)] + [("V", c, h) for c in range(NC) for h in range(upc)]
    def ubuf(ui):
        return RB + 4 * U * (ui % R)
    def issue(ui):
        if ui >= len(units):
            return
        kind, c, h = units[ui]
        b = ubuf(ui)
        if o.thr >= 0 and o.thr0 <= ui < o.thr1:
            if o.thrall:
                a(f"s_waitcnt vmcnt({o.thr})")
            else:
                a("s_bitcmp1_b32 s23, 0")
                a(f"s_cbranch_scc1 L_thr{ui}")
                a(f"s_waitcnt vmcnt({o.thr})")
                a.label(f"L_thr{ui}")
        if o.ilv and kind == "K":
            for i in range(U):
                n = h * U + i
                off = coff(c) + (n >> 1) * 8192
                if (n & 1) == 0:
                    if off == 0:
                        sb = sA
                    else:
                        sb = sB0 if ((n >> 1) & 1) == 0 else sB1
                        a(f"s_add_u32 {sr(sb)}, {sr(sA)}, 0x{off:x}")
                va = vKa if (n & 1) == 0 else vKb
                a.vmem(f"buffer_load_dwordx4 {vr(b + 4*i, 4)}, {vr(va)}, {sr(sK,4)}, {sr(sb)} offen{nt}", (ui, i))
            return
        if c == 0:
            sb = sA
        else:
            sb = sB0 if (ui & 1) == 0 else sB1
            a(f"s_add_u32 {sr(sb)}, {sr(sA)}, 0x{coff(c):x}")
        for i in range(U):
            n = h * U + i
            if kind == "K":
                va = vKa if n < 4 else vKb
                a.vmem(f"buffer_load_dwordx4 {vr(b + 4*i, 4)}, {vr(va)}, {sr(sK,4)}, {sr(sb)} offen offset:{(n&3)*1024}{nt}", (ui, i))
            elif o.ilv:
                half, e = n >> 2, n & 3
                va = vV if e < 2 else vV2
                a.vmem(f"buffer_load_dwordx4 {vr(b + 4*i, 4)}, {vr(va)}, {sr(sV,4)}, {sr(sb)} offen offset:{(e&1)*512+half*256}{nt}", (ui, i))
            else:
                half, e = n >> 2, n & 3
                a.vmem(f"buffer_load_dwordx4 {vr(b + 4*i, 4)}, {vr(vV)}, {sr(sV,4)}, {sr(sb)} offen offset:{e*512+half*256}{nt}", (ui, i))
    def reg(kind_base_ui, n):
        return ubuf(kind_base_ui + n // U) + 4 * (n % U)

    def nonce_atomic():
        a(f"s_lshl_b32 {sr(sT1)}, {sr(sPair)}, 5")
        a("s_cmp_lg_u32 s3, 3")
        a("s_cbranch_scc1 L_no_nonce")
        a(f"s_or_b32 {sr(sNon)}, {sr(sNon)}, 1")
        a(f"v_mov_b32 {vr(NV)}, {sr(sNon)}")
        a("s_mov_b64 exec, 1")
        a(f"buffer_atomic_cmpswap {vr(NV,2)}, {vr(NV+2)}, {sr(sDBG,4)}, {sr(sT1)} offen sc0")
        a("s_mov_b64 exec, -1")
        a.label("L_no_nonce")
    if o.nat < 0:
        nonce_atomic()
    if o.kfirst:
        issue(0)
    a.vmem(f"buffer_load_dwordx4 {vr(T)}, {sr(sSM,4)}, {sr(sT3)} offen lds", "sm")
    a(f"s_add_u32 m0, m0, 1024")
    a(f"s_add_u32 {sr(sT3)}, {sr(sT3)}, 0x8000")
    a.vmem(f"buffer_load_dwordx4 {vr(T)}, {sr(sSM,4)}, {sr(sT3)} offen lds", "sm")
    a(f"s_lshl_b32 {sr(sT2)}, s3, 9")
    a(f"s_add_u32 m0, {sr(sT2)}, {LDS_Q}")
    a(f"s_lshl_b32 {sr(sT3)}, {sr(sPair)}, 11")
    a(f"s_add_u32 {sr(sT3)}, {sr(sT3)}, {sr(sT2)}")
    a("s_mov_b32 exec_hi, 0")
    a.vmem(f"buffer_load_dwordx4 {vr(vKa)}, {sr(sQ,4)}, {sr(sT3)} offen lds", "sm")
    a("s_mov_b32 exec_hi, -1")
    npre = min(R, o.pre)
    for ui in range(1 if o.kfirst else 0, npre):
        issue(ui)
    a(f"s_load_dwordx2 {sr(sV,2)}, s[0:1], 16")
    a(f"s_load_dwordx2 {sr(sWS,2)}, s[0:1], 72")
    a(f"s_load_dwordx2 {sr(sOUT,2)}, s[0:1], 56")
    a(f"v_lshrrev_b32 v4, 4, v2")
    a(f"v_and_b32 v5, 15, v2")
    a(f"v_lshlrev_b32 v6, 4, v5")
    a(f"v_lshl_add_u32 {vr(vV)}, v4, {13 if o.ilv else 11}, v6")
    a(f"v_add_u32 {vr(vV2)}, 0x1000, {vr(vV)}")
    a(f"v_lshlrev_b32 {vr(vS8)}, 3, v3")
    a(f"s_lshl_b32 {sr(sT1)}, s3, {2 if o.ilv else 5}")
    a(f"v_lshlrev_b32 v6, {5 if o.ilv else 3}, v4")
    a(f"v_add_u32 {vr(vG8)}, {sr(sT1)}, v6")
    a(f"v_and_b32 v9, 7, v2")
    a(f"v_lshlrev_b32 v6, 8, v9")
    a(f"v_lshl_add_u32 {vr(T+1)}, v4, 4, v6")
    a(f"s_mul_i32 {sr(sT1)}, s3, {WREG}")
    a(f"v_mul_u32_u24 v6, {RS}, v7")
    a(f"v_add3_u32 {vr(vW)}, v6, {vr(vS8)}, {sr(sT1)}")
    a(f"v_mul_u32_u24 v6, {RS}, v5")
    a(f"v_lshl_add_u32 v6, v4, 4, v6")
    a(f"v_add_u32 {vr(vR)}, {sr(sT1)}, v6")
    a(f"v_lshrrev_b32 v6, 3, v5")
    a(f"v_sub_u32 v6, 0, v6")
    a(f"v_lshlrev_b32 {vr(vM)}, 16, v6")
    srd_tail(sV, 0x8000000)
    srd_tail(sWS, 0x20000000)
    srd_tail(sOUT, 16384)
    a(f"s_mov_b32 {sr(sPerm)}, 0x07060302")
    a(f"s_mov_b32 {sr(sC1)}, 0x{f32bits(c1):08x}")
    a(f"s_mov_b32 {sr(sHi)}, 0xffff0000")
    a(f"v_cmp_ne_u32 {sr(sMask,2)}, 0, {vr(vM)}")
    stamp()
    a.wait_vm({"sm"})
    a("s_barrier")
    for m in range(4):
        a(f"ds_read_b128 {vr(Q+4*m,4)}, {vr(T+1)} offset:{LDS_Q + m*64}")
    def read_ks(c):
        off = (c >> 2) * 512 + ((c >> 1) & 1) * 256
        a(f"ds_read_b64 {vr(KR,2)}, {vr(vS8)} offset:{LDS_S + off}")
        a(f"ds_read_b64 {vr(KR+2,2)}, {vr(vS8)} offset:{LDS_S + 2048 + off}")
    def read_sz(c):
        off = (c >> 2) * 512 + (c & 3) * 128
        z = SZ + 4 * (c & 1)
        if o.ilv:
            a(f"ds_read_b32 {vr(z)}, {vr(vG8)} offset:{LDS_S + 4096 + off}")
            a(f"ds_read_b32 {vr(z+1)}, {vr(vG8)} offset:{LDS_S + 4096 + off + 16}")
            a(f"ds_read_b32 {vr(z+2)}, {vr(vG8)} offset:{LDS_S + 6144 + off}")
            a(f"ds_read_b32 {vr(z+3)}, {vr(vG8)} offset:{LDS_S + 6144 + off + 16}")
        else:
            a(f"ds_read_b64 {vr(z,2)}, {vr(vG8)} offset:{LDS_S + 4096 + off}")
            a(f"ds_read_b64 {vr(z+2,2)}, {vr(vG8)} offset:{LDS_S + 6144 + off}")
    read_ks(0)
    for ui in range(npre, R):
        issue(ui)

    for c in range(NC):
        u0 = c * upc
        if (c & 1) == 0:
            a("s_waitcnt lgkmcnt(0)")
            a(f"v_lshlrev_b32 {vr(KF)}, 16, {vr(KR)}")
            a(f"v_and_b32 {vr(KF+1)}, {sr(sHi)}, {vr(KR)}")
            a(f"v_lshlrev_b32 {vr(KF+2)}, 16, {vr(KR+1)}")
            a(f"v_and_b32 {vr(KF+3)}, {sr(sHi)}, {vr(KR+1)}")
            a(f"v_lshlrev_b32 {vr(KF+4)}, 16, {vr(KR+2)}")
            a(f"v_and_b32 {vr(KF+5)}, {sr(sHi)}, {vr(KR+2)}")
            a(f"v_lshlrev_b32 {vr(KF+6)}, 16, {vr(KR+3)}")
            a(f"v_and_b32 {vr(KF+7)}, {sr(sHi)}, {vr(KR+3)}")
            for k in range(4):
                a(f"v_mul_f32 {vr(KF+4+k)}, -{vr(KF+4+k)}, {vr(KF+k)}")
        if c >= 2:
            s0 = S + 4*(c-2)
            if c == 2:
                a(f"v_max_f32 {vr(mx0)}, {vr(s0)}, {vr(s0+1)}")
                a(f"v_max_f32 {vr(mx1)}, {vr(s0+2)}, {vr(s0+3)}")
            else:
                a(f"v_max3_f32 {vr(mx0)}, {vr(mx0)}, {vr(s0)}, {vr(s0+1)}")
                a(f"v_max3_f32 {vr(mx1)}, {vr(mx1)}, {vr(s0+2)}, {vr(s0+3)}")
        for n in range(8):
            if n % o.ksub == 0:
                nn = n + o.ksub - 1
                a.wait_vm({(u0 + nn // U, nn % U)})
                if c == 0 and n == 0:
                    stamp()
            x = reg(u0, n)
            for k in range(4):
                a(f"v_cvt_f32_i32 {vr(x+k)}, {vr(x+k)}")
            a(f"v_pk_fma_f32 {vr(x,2)}, {vr(x,2)}, {vr(KF,2)}, {vr(KF+4,2)}")
            a(f"v_pk_fma_f32 {vr(x+2,2)}, {vr(x+2,2)}, {vr(KF+2,2)}, {vr(KF+6,2)}")
            a(f"v_cvt_pk_bf16_f32 {vr(x)}, {vr(x)}, {vr(x+1)}")
            a(f"v_cvt_pk_bf16_f32 {vr(x+1)}, {vr(x+2)}, {vr(x+3)}")
            a(f"ds_write_b64 {vr(vW)}, {vr(x,2)} offset:{n*2*RS}")
            if (n + 1) % U == 0 and n < 7:
                issue(u0 + n // U + R)
        for m in range(4):
            a(f"ds_read_b128 {vr(T+4*m,4)}, {vr(vR)} offset:{m*64}")
        extra = 0
        if (c & 1) and c < NC - 1:
            read_ks(c + 1); extra = 2
        if c == NC - 1:
            read_sz(0); extra = 4 if o.ilv else 2
        issue(u0 + upc - 1 + R)
        if c == o.nat:
            nonce_atomic()
        for m in range(4):
            a(f"s_waitcnt lgkmcnt({3-m+extra})")
            cc = "0" if m == 0 else vr(S + 4*c, 4)
            a(f"v_mfma_f32_16x16x32_bf16 {vr(S+4*c,4)}, {vr(T+4*m,4)}, {vr(Q+4*m,4)}, {cc}")
    stamp()
    s0 = S + 4*(NC-2)
    a(f"v_max3_f32 {vr(mx0)}, {vr(mx0)}, {vr(s0)}, {vr(s0+1)}")
    a(f"v_max3_f32 {vr(mx1)}, {vr(mx1)}, {vr(s0+2)}, {vr(s0+3)}")
    eLane, eW, eR, eG, eZ, eML, eH, vMx = KF, KF+1, KF+2, KF+3, KF+4, KF+5, KF+6, KF+7
    a(f"v_mbcnt_lo_u32_b32 {vr(eLane)}, -1, 0")
    a(f"v_mbcnt_hi_u32_b32 {vr(eLane)}, -1, {vr(eLane)}")
    a(f"v_and_b32 {vr(eH)}, 7, {vr(eLane)}")
    a(f"v_mul_u32_u24 {vr(eW)}, {HS}, {vr(eH)}")
    a(f"v_bfe_u32 {vr(eR)}, {vr(eLane)}, 3, 1")
    a(f"v_lshl_add_u32 {vr(eW)}, {vr(eR)}, 8, {vr(eW)}")
    a(f"v_lshrrev_b32 {vr(eR)}, 4, {vr(eLane)}")
    a(f"v_lshl_add_u32 {vr(eW)}, {vr(eR)}, 6, {vr(eW)}")
    s0 = S + 4*(NC-1)
    a(f"v_max3_f32 {vr(mx0)}, {vr(mx0)}, {vr(s0)}, {vr(s0+1)}")
    a(f"v_max3_f32 {vr(mx1)}, {vr(mx1)}, {vr(s0+2)}, {vr(s0+3)}")
    def xlane(op, x0, x1):
        a(f"v_mov_b32 {vr(x1)}, {vr(x0)}")
        a("s_nop 1")
        a(f"v_permlane32_swap_b32 {vr(x0)}, {vr(x1)}")
        a("s_nop 1")
        a(f"{op} {vr(x0)}, {vr(x0)}, {vr(x1)}")
        a(f"v_mov_b32 {vr(x1)}, {vr(x0)}")
        a("s_nop 1")
        a(f"v_permlane16_swap_b32 {vr(x0)}, {vr(x1)}")
        a("s_nop 1")
        a(f"{op} {vr(x0)}, {vr(x0)}, {vr(x1)}")
    a(f"v_max_f32 {vr(mx0)}, {vr(mx0)}, {vr(mx1)}")
    xlane("v_max_f32", mx0, mx1)
    a(f"v_mul_f32 {vr(vMx)}, {sr(sC1)}, {vr(mx0)}")

    def make_p(c):
        s0 = S + 4*c
        z = SZ + 4 * (c & 1)
        p = PP + 2 * (c & 1)
        for r in range(4):
            a(f"v_fma_f32 {vr(s0+r)}, {vr(s0+r)}, {sr(sC1)}, -{vr(vMx)}")
        for r in range(4):
            a(f"v_exp_f32 {vr(s0+r)}, {vr(s0+r)}")
        a("s_waitcnt lgkmcnt(0)")
        a(f"v_lshlrev_b32 {vr(KR)}, 16, {vr(z)}")
        a(f"v_and_b32 {vr(KR+1)}, {sr(sHi)}, {vr(z)}")
        a(f"v_lshlrev_b32 {vr(KR+2)}, 16, {vr(z+1)}")
        a(f"v_and_b32 {vr(KR+3)}, {sr(sHi)}, {vr(z+1)}")
        if c + 1 < NC:
            read_sz(c + 1)
        a(f"v_add_f32 {vr(mx0)}, {vr(s0)}, {vr(s0+1)}")
        a(f"v_add_f32 {vr(mx1)}, {vr(s0+2)}, {vr(s0+3)}")
        for r in range(4):
            a(f"v_mul_f32 {vr(s0+r)}, {vr(s0+r)}, {vr(KR+r)}")
        if c == 0:
            a(f"v_add_f32 {vr(vL)}, {vr(mx0)}, {vr(mx1)}")
        else:
            a(f"v_add_f32 {vr(mx0)}, {vr(mx0)}, {vr(mx1)}")
        for r in range(4):
            a(f"v_and_b32 {vr(KR+r)}, {vr(vM)}, {vr(s0+r)}")
        if c > 0:
            a(f"v_add_f32 {vr(vL)}, {vr(vL)}, {vr(mx0)}")
        for r in range(4):
            a(f"v_sub_f32 {vr(s0+r)}, {vr(s0+r)}, {vr(KR+r)}")
        a(f"v_perm_b32 {vr(p)}, {vr(s0+1)}, {vr(s0)}, {sr(sPerm)}")
        a(f"v_perm_b32 {vr(p+1)}, {vr(s0+3)}, {vr(s0+2)}, {sr(sPerm)}")
        a("s_nop 1")
        cc = "0" if c == 0 else vr(CZ, 4)
        a(f"v_mfma_f32_16x16x16_bf16 {vr(CZ,4)}, {vr(z+2,2)}, {vr(p,2)}, {cc}")
    make_p(0)
    stamp()

    def late_setup():
        a.comment("late setup")
        a(f"s_mul_i32 {sr(sT1)}, s3, {WREG}")
        a(f"v_add_u32 {vr(eW)}, {sr(sT1)}, {vr(eW)}")
        a(f"v_lshrrev_b32 {vr(T)}, 5, {vr(eLane)}")
        a(f"s_lshl_b32 {sr(sT1)}, s3, 1")
        a(f"v_add_u32 {vr(T)}, {sr(sT1)}, {vr(T)}")
        a(f"v_mul_u32_u24 {vr(eR)}, {HS}, {vr(T)}")
        a(f"v_add_u32 {vr(eR)}, {vr(vS8)}, {vr(eR)}")
        a(f"v_lshlrev_b32 {vr(eML)}, 4, {vr(T)}")
        a(f"v_lshlrev_b32 {vr(eG)}, 10, {vr(T)}")
        a(f"v_lshl_add_u32 {vr(eG)}, {vr(vS8)}, 1, {vr(eG)}")
        a(f"s_lshl_b32 s22, s2, 13")
        a("s_cmp_lg_u32 s3, 3")
        a("s_cbranch_scc1 L_no_nonce2")
        a(f"v_readfirstlane_b32 {sr(sT1)}, {vr(NV)}")
        a("s_nop 3")
        a(f"s_cmp_eq_u32 {sr(sT1)}, 0")
        a(f"s_cselect_b32 {sr(sT1)}, {sr(sNon)}, {sr(sT1)}")
        a(f"v_mov_b32 {vr(NV)}, {sr(sT1)}")
        a(f"v_mov_b32 {vr(NV+1)}, 0")
        a(f"ds_write_b32 {vr(NV+1)}, {vr(NV)} offset:{LDS_N}")
        a.label("L_no_nonce2")
        a(f"v_lshrrev_b32 {vr(NV+2)}, 3, {vr(eLane)}")
        a(f"v_lshlrev_b32 {vr(NV+2)}, 13, {vr(NV+2)}")
        a(f"v_lshl_add_u32 {vr(NV+2)}, {vr(eH)}, 4, {vr(NV+2)}")
        a(f"v_lshlrev_b32 {vr(NV+3)}, 2, {vr(eH)}")
        a(f"v_mov_b32 {vr(NV+1)}, 0")
        a(f"v_lshlrev_b32 {vr(NV+4)}, 4, {vr(eH)}")
        a(f"s_lshl_b32 {sr(sT1)}, s3, 2")
        a(f"v_add_u32 {vr(NV+4)}, {sr(sT1)}, {vr(NV+4)}")
        a(f"ds_write_b32 {vr(NV+4)}, {vr(vMx)} offset:{LDS_M}")
        a(f"s_lshl_b32 s16, {sr(sPair)}, 18")
        a(f"s_lshl_b32 s17, {sr(sWgp)}, 9")
        a("s_add_u32 s16, s16, s17")
        a("s_lshl_b32 s17, s3, 7")
        a("s_add_u32 s16, s16, s17")
        a("s_add_u32 s17, s16, 0x10000")
        a("s_add_u32 s18, s16, 0x20000")
        a("s_add_u32 s19, s16, 0x30000")
        a(f"s_lshl_b32 s20, {sr(sPair)}, 11")
        a(f"s_lshl_b32 s21, {sr(sWgp)}, 7")
        a("s_add_u32 s20, s20, s21")
        a("s_lshl_b32 s21, s3, 5")
        a("s_add_u32 s20, s20, s21")
        a("s_mov_b32 s21, 0x40000")
        if o.own:
            a(f"s_and_b32 {sr(sT1)}, {sr(sWgp)}, 7")
            a(f"s_lshl_b32 {sr(sT1)}, {sr(sT1)}, 3")
            a(f"s_mov_b64 s[28:29], 0xff")
            a(f"s_lshl_b64 s[28:29], s[28:29], {sr(sT1)}")
            a(f"s_cmp_lt_u32 {sr(sWgp)}, 8")
            a("s_cselect_b64 s[24:25], s[28:29], 0")
            a("s_cselect_b64 s[26:27], 0, s[28:29]")
            a(f"s_lshl_b32 {sr(sT1)}, {sr(sWgp)}, 9")
            a(f"s_lshl_b32 {sr(sT2)}, s3, 7")
            a(f"s_add_u32 {sr(sT1)}, {sr(sT1)}, {sr(sT2)}")
            a(f"s_and_b32 {sr(sT1)}, {sr(sT1)}, 0x1fff")
            a(f"v_lshlrev_b32 {vr(NV+5)}, 4, {vr(eH)}")
            a(f"v_add_u32 {vr(NV+5)}, {sr(sT1)}, {vr(NV+5)}")

    vu0 = NC * upc
    for c in range(NC):
        u0 = vu0 + c * upc
        p = PP + 2 * (c & 1)
        if c + 1 < NC:
            make_p(c + 1)
        if c == 1:
            late_setup()
        if c == o.warm:
            a("s_mov_b64 exec, 1")
            a.vmem(f"buffer_load_dword {vr(NV+6)}, {vr(NV+1)}, {sr(sWS,4)}, s22 offen {o.ldf}", "warm")
            a.vmem(f"buffer_load_dword {vr(NV+7)}, {vr(NV+1)}, {sr(sOUT,4)}, 0 offen {o.ldf}", "warm")
            a("s_mov_b64 exec, -1")
        last = c == NC - 1
        E = S
        if last:
            a(f"v_mov_b32 {vr(mx0)}, {vr(vL)}")
            xlane("v_add_f32", mx0, mx1)
            a(f"ds_write_b32 {vr(NV+4)}, {vr(mx0)} offset:{LDS_L}")
            for x in range(32):
                a(f"v_sub_f32 {vr(O+x)}, {vr(O+x)}, {vr(CZ)}")
        for half in range(2):
            nn = half * 4 + 3
            rr = [reg(u0, half * 4 + e) for e in range(4)]
            if last:
                for e in range(4):
                    n2 = half * 4 + e
                    a.wait_vm({(u0 + n2 // U, n2 % U)})
                    for k in range(4):
                        a(f"v_cvt_f32_i32 {vr(rr[e]+k)}, {vr(rr[e]+k)}")
                    if e & 1:
                        for cc in range(4):
                            t = T + 8*half + 2*cc + (e >> 1)
                            a(f"v_cvt_pk_bf16_f32 {vr(t)}, {vr(rr[e-1]+cc)}, {vr(rr[e]+cc)}")
                    if half == 1 and e == 1:
                        for cc in range(4):
                            for r in range(4):
                                a0 = O + 4*cc + r
                                a(f"v_add_f32_dpp {vr(E+4*r+cc)}, {vr(a0)}, {vr(a0)} row_ror:8 row_mask:0xf bank_mask:0x3")
            else:
                a.wait_vm({(u0 + nn // U, nn % U)})
                for e in range(4):
                    for k in range(4):
                        a(f"v_cvt_f32_i32 {vr(rr[e]+k)}, {vr(rr[e]+k)}")
                for cc in range(4):
                    t = T + 8*half + 2*cc
                    a(f"v_cvt_pk_bf16_f32 {vr(t)}, {vr(rr[0]+cc)}, {vr(rr[1]+cc)}")
                    a(f"v_cvt_pk_bf16_f32 {vr(t+1)}, {vr(rr[2]+cc)}, {vr(rr[3]+cc)}")
            if U == 4 or half == 1:
                issue(u0 + nn // U + R)
            for cc in range(4):
                t = T + 8*half + 2*cc
                acc = O + 16*half + 4*cc
                cin = "0" if c == 0 else vr(acc, 4)
                a(f"v_mfma_f32_16x16x16_bf16 {vr(acc,4)}, {vr(t,2)}, {vr(p,2)}, {cin}")
    stamp()

    a("s_nop 4")
    for cc in range(4):
        for r in range(4):
            a1 = O + 16 + 4*cc + r
            a(f"v_add_f32_dpp {vr(E+4*r+cc)}, {vr(a1)}, {vr(a1)} row_ror:8 row_mask:0xf bank_mask:0xc")
            if cc == 3:
                a(f"ds_write_b128 {vr(eW)}, {vr(E+4*r,4)} offset:{16*r}")
    a("s_waitcnt lgkmcnt(0)")
    a("s_barrier")
    F = 0
    Mr, Lr = F + 16, F + 20
    P = 48
    def poll_issue():
        for n in range(4):
            if o.own and n < 2:
                a(f"s_not_b64 exec, s[{24+2*n}:{25+2*n}]")
            if o.own and n == 2:
                a("s_mov_b64 exec, -1")
            a(f"buffer_load_dwordx4 {vr(P+4*n,4)}, {vr(NV+2)}, {sr(sWS,4)}, s{16+n} offen {o.ldf}")
    a(f"ds_read_b128 {vr(Mr,4)}, {vr(eML)} offset:{LDS_M}")
    a(f"ds_read_b128 {vr(Lr,4)}, {vr(eML)} offset:{LDS_L}")
    for w in range(4):
        a(f"ds_read_b64 {vr(F+4*w,2)}, {vr(eR)} offset:{w*WREG}")
        a(f"ds_read_b64 {vr(F+4*w+2,2)}, {vr(eR)} offset:{w*WREG+256}")
    a(f"ds_read_b32 {vr(NV)}, {vr(NV+1)} offset:{LDS_N}")
    if o.own == 1:
        a(f"s_cmp_lt_u32 {sr(sWgp)}, 16")
        a("s_cbranch_scc0 L_no_prepoll")
        poll_issue()
        a.label("L_no_prepoll")
    a("s_waitcnt lgkmcnt(10)")
    G = F + 24
    a(f"v_max3_f32 {vr(G)}, {vr(Mr)}, {vr(Mr+1)}, {vr(Mr+2)}")
    a(f"v_max_f32 {vr(G)}, {vr(G)}, {vr(Mr+3)}")
    for w in range(4):
        a(f"v_sub_f32 {vr(Mr+w)}, {vr(Mr+w)}, {vr(G)}")
    for w in range(4):
        a(f"v_exp_f32 {vr(Mr+w)}, {vr(Mr+w)}")
    a("s_waitcnt lgkmcnt(9)")
    a(f"v_mul_f32 {vr(G+1)}, {vr(Mr)}, {vr(Lr)}")
    for w in range(1, 4):
        a(f"v_fmac_f32 {vr(G+1)}, {vr(Mr+w)}, {vr(Lr+w)}")
    a(f"v_rcp_f32 {vr(G+2)}, {vr(G+1)}")
    a(f"v_log_f32 {vr(G+3)}, {vr(G+1)}")
    a("s_nop 0")
    for w in range(4):
        a(f"v_mul_f32 {vr(Mr+w)}, {vr(Mr+w)}, {vr(G+2)}")
    O1, O2 = 32, 36
    a(f"v_add_f32 {vr(O1+2)}, {vr(G)}, {vr(G+3)}")
    a(f"v_add_f32 {vr(O2+2)}, {vr(G)}, {vr(G+3)}")
    a("s_waitcnt lgkmcnt(0)")
    dst = [O1, O1+1, O2, O2+1]
    for k in range(4):
        a(f"v_mul_f32 {vr(dst[k])}, {vr(Mr)}, {vr(F+k)}")
    for w in range(1, 4):
        for k in range(4):
            a(f"v_fmac_f32 {vr(dst[k])}, {vr(Mr+w)}, {vr(F+4*w+k)}")
    a(f"v_mov_b32 {vr(O1+3)}, {vr(NV)}")
    a(f"v_mov_b32 {vr(O2+3)}, {vr(NV)}")
    a(f"s_cmp_lt_u32 {sr(sWgp)}, 16")
    a(f"buffer_store_dwordx4 {vr(O1,4)}, {vr(eG)}, {sr(sWS,4)}, s22 offen {o.stf}")
    a(f"buffer_store_dwordx4 {vr(O2,4)}, {vr(eG)}, {sr(sWS,4)}, s22 offen offset:512 {o.stf}")
    if o.stamp == 2:
        a("s_memrealtime s[82:83]")
        a("s_memrealtime s[80:81]")
    a("s_cbranch_scc0 L_fin_done")
    if o.own:
        if o.own == 2:
            poll_issue()
        a(f"ds_write_b128 {vr(eG)}, {vr(O1,4)} offset:{LDS_S}")
        a(f"ds_write_b128 {vr(eG)}, {vr(O2,4)} offset:{LDS_S+512}")
        a("s_waitcnt lgkmcnt(0)")
        a("s_barrier")
        a("s_mov_b64 exec, s[24:25]")
        a(f"ds_read_b128 {vr(P,4)}, {vr(NV+5)} offset:{LDS_S}")
        a("s_mov_b64 exec, s[26:27]")
        a(f"ds_read_b128 {vr(P+4,4)}, {vr(NV+5)} offset:{LDS_S}")
        a("s_mov_b64 exec, -1")
        a(f"s_waitcnt vmcnt({2 if o.own == 1 else 0}) lgkmcnt(0)")
        a("s_branch L_check")
    if o.sel:
        for n in range(4):
            a(f"s_mov_b64 s[{24+2*n}:{25+2*n}], -1")
        a.label("L_poll")
        for n in range(4):
            a(f"s_mov_b64 exec, s[{24+2*n}:{25+2*n}]")
            a(f"s_cbranch_execz L_skip{n}")
            a(f"buffer_load_dwordx4 {vr(P+4*n,4)}, {vr(NV+2)}, {sr(sWS,4)}, s{16+n} offen {o.ldf}")
            a.label(f"L_skip{n}")
        a("s_mov_b64 exec, -1")
        a("s_sub_u32 s21, s21, 1")
        a("s_cbranch_scc1 L_fin_done")
        a("s_waitcnt vmcnt(0)")
        for n in range(4):
            a(f"v_xor_b32 {vr(P+16+n)}, {vr(P+4*n+3)}, {vr(NV)}")
            a(f"v_xor_b32_dpp {vr(P+20+n)}, {vr(P+4*n+2)}, {vr(P+4*n+2)} quad_perm:[1,0,3,2] {DPP}")
        for n in range(4):
            a(f"v_or_b32 {vr(P+16+n)}, {vr(P+16+n)}, {vr(P+20+n)}")
        for n in range(4):
            a(f"v_cmp_ne_u32 s[{24+2*n}:{25+2*n}], 0, {vr(P+16+n)}")
        a(f"v_max3_f32 {vr(P+24)}, {vr(P+2)}, {vr(P+6)}, {vr(P+10)}")
        a(f"v_max_f32 {vr(P+24)}, {vr(P+24)}, {vr(P+14)}")
        a("s_or_b64 s[32:33], s[24:25], s[26:27]")
        a("s_or_b64 s[34:35], s[28:29], s[30:31]")
        a("s_or_b64 s[32:33], s[32:33], s[34:35]")
        a("s_cbranch_scc1 L_poll")
    else:
        a.label("L_poll")
        poll_issue()
        a("s_sub_u32 s21, s21, 1")
        a("s_cbranch_scc1 L_fin_done")
        if o.own:
            a("s_waitcnt vmcnt(0)")
            a.label("L_check")
        for n in range(4):
            if not o.own:
                a(f"s_waitcnt vmcnt({3-n})")
            a(f"v_xor_b32 {vr(P+16+n)}, {vr(P+4*n+3)}, {vr(NV)}")
            a(f"v_xor_b32_dpp {vr(P+20+n)}, {vr(P+4*n+2)}, {vr(P+4*n+2)} quad_perm:[1,0,3,2] {DPP}")
        a(f"v_or3_b32 {vr(P+16)}, {vr(P+16)}, {vr(P+17)}, {vr(P+18)}")
        a(f"v_or3_b32 {vr(P+20)}, {vr(P+20)}, {vr(P+21)}, {vr(P+22)}")
        a(f"v_or3_b32 {vr(P+16)}, {vr(P+16)}, {vr(P+19)}, {vr(P+23)}")
        a(f"v_or_b32 {vr(P+16)}, {vr(P+16)}, {vr(P+20)}")
        a(f"v_cmp_ne_u32 vcc, 0, {vr(P+16)}")
        a(f"v_max3_f32 {vr(P+24)}, {vr(P+2)}, {vr(P+6)}, {vr(P+10)}")
        a(f"v_max_f32 {vr(P+24)}, {vr(P+24)}, {vr(P+14)}")
        if o.sleep:
            a("s_cbranch_vccz L_poll_ok")
            a(f"s_sleep {o.sleep}")
            a("s_branch L_poll")
            a.label("L_poll_ok")
        else:
            a("s_cbranch_vccnz L_poll")
    if o.stamp == 2:
        a("s_memrealtime s[80:81]")
    def xl3(op, xs, ts):
        a("s_nop 1")
        for x in xs:
            a(f"{op}_dpp {vr(x)}, {vr(x)}, {vr(x)} row_ror:8 {DPP}")
        for sw in ("v_permlane16_swap_b32", "v_permlane32_swap_b32"):
            for x, t in zip(xs, ts):
                a(f"v_mov_b32 {vr(t)}, {vr(x)}")
            a("s_nop 1")
            for x, t in zip(xs, ts):
                a(f"{sw} {vr(x)}, {vr(t)}")
            a("s_nop 1")
            for x, t in zip(xs, ts):
                a(f"{op} {vr(x)}, {vr(x)}, {vr(t)}")
    xl3("v_max_f32", [P+24], [P+25])
    for n in range(4):
        a(f"v_sub_f32 {vr(P+4*n+2)}, {vr(P+4*n+2)}, {vr(P+24)}")
    for n in range(4):
        a(f"v_exp_f32 {vr(P+4*n+2)}, {vr(P+4*n+2)}")
    W, A0, A1 = P+26, P+27, P+28
    a(f"v_add_f32 {vr(W)}, {vr(P+2)}, {vr(P+6)}")
    a(f"v_mul_f32 {vr(A0)}, {vr(P+2)}, {vr(P)}")
    a(f"v_mul_f32 {vr(A1)}, {vr(P+2)}, {vr(P+1)}")
    a(f"v_add_f32 {vr(W)}, {vr(W)}, {vr(P+10)}")
    for n in range(1, 4):
        a(f"v_fmac_f32 {vr(A0)}, {vr(P+4*n+2)}, {vr(P+4*n)}")
        a(f"v_fmac_f32 {vr(A1)}, {vr(P+4*n+2)}, {vr(P+4*n+1)}")
    a(f"v_add_f32 {vr(W)}, {vr(W)}, {vr(P+14)}")
    xl3("v_add_f32", [W, A0, A1], [P+29, P+30, P+31])
    a(f"v_rcp_f32 {vr(W)}, {vr(W)}")
    a("s_mov_b64 exec, 0xff")
    a(f"v_mul_f32 {vr(A0)}, {vr(A0)}, {vr(W)}")
    a(f"v_mul_f32 {vr(A1)}, {vr(A1)}, {vr(W)}")
    a(f"v_cvt_pk_bf16_f32 {vr(A0)}, {vr(A0)}, {vr(A1)}")
    a(f"buffer_store_dword {vr(A0)}, {vr(NV+3)}, {sr(sOUT,4)}, s20 offen")
    a("s_mov_b64 exec, -1")
    a.label("L_fin_done")
    if o.stamp:
        stamp()
        a("s_waitcnt lgkmcnt(0)")
        a("s_getreg_b32 s5, hwreg(HW_REG_XCC_ID)")
        a("s_lshl_b32 s4, s2, 2")
        a("s_add_u32 s4, s4, s3")
        a("s_lshl_b32 s4, s4, 6")
        a("s_add_u32 s4, s4, 0x4000000")
        a("s_nop 1")
        for i in range(8):
            a(f"v_mov_b32 v{i}, s{72+2*i}")
        a("v_mov_b32 v8, s5")
        a("v_mov_b32 v9, s21")
        a("v_mov_b32 v12, 0")
        a("s_mov_b64 exec, 1")
        a(f"buffer_store_dwordx4 v[0:3], v12, {sr(sWS,4)}, s4 offen")
        a(f"buffer_store_dwordx4 v[4:7], v12, {sr(sWS,4)}, s4 offen offset:16")
        a(f"buffer_store_dwordx2 v[8:9], v12, {sr(sWS,4)}, s4 offen offset:32")
    a.label("L_main_end")
    a("s_endpgm")
    lds = LDS_N + 16
    return a.text(), nvgpr, lds

def main():
    ap = argparse.ArgumentParser()
    ap.add_argument("-o", default="/dev/stdout")
    ap.add_argument("--ring", type=int, default=3)
    ap.add_argument("--unit", type=int, default=8)
    ap.add_argument("--stamp", type=int, default=0)
    ap.add_argument("--ksub", type=int, default=4)
    ap.add_argument("--kfirst", type=int, default=1)
    ap.add_argument("--nat", type=int, default=-1)
    ap.add_argument("--pre", type=int, default=99)
    ap.add_argument("--thr", type=int, default=-1)
    ap.add_argument("--own", type=int, default=0)
    ap.add_argument("--ilv", type=int, default=0)
    ap.add_argument("--sel", type=int, default=0)
    ap.add_argument("--warm", type=int, default=-1)
    ap.add_argument("--stf", default="sc1")
    ap.add_argument("--ldf", default="sc1")
    ap.add_argument("--sleep", type=int, default=0)
    ap.add_argument("--thr0", type=int, default=2)
    ap.add_argument("--thr1", type=int, default=99)
    ap.add_argument("--thrall", type=int, default=0)
    ap.add_argument("--ldspad", type=int, default=81920)
    o = ap.parse_args()
    k1 = NAME + "_kernel"
    body1, nv1, lds1 = gen_main(o, k1)
    s = HEADER
    s += f"; @launch grid=(256,1,1) block=(256,1,1) lds={lds1}\n"
    s += '.amdgcn_target "amdgcn-amd-amdhsa--gfx950"\n.text\n'
    s += f".globl {k1}\n.p2align 8\n.type {k1},@function\n{body1}"
    s += '.section .rodata,"a"\n.p2align 6\n'
    s += kd(k1, 264, 96)
    open(o.o, "w").write(s)

if __name__ == "__main__":
    main()
```

```python
import sys, math, struct, argparse

NAME = "standalone__kv_cache_quant_int4_int2_kv_with_per_channel_or_per_token_scales__decode"

HEADER = """; Kernarg layout for this problem (80 bytes, ptrs only, base s[0:1]):
"""

def f32bits(x):
    return struct.unpack("<I", struct.pack("<f", x))[0]

class Asm:
    def __init__(self):
        self.lines = []
        self.vm = []
        self.done = -1
    mute = ()
    def __call__(self, s):
        if self.mute and s.startswith(self.mute):
            return
        self.lines.append("    " + s)
    def label(self, s):
        self.lines.append(s + ":")
    def comment(self, s):
        self.lines.append("    ; " + s)
    def vmem(self, s, tag):
        self(s)
        self.vm.append(tag)
        assert len(self.vm) - 1 - self.done <= 63, "too many VMEM in flight"
    def wait_vm(self, tags):
        last = max(i for i, t in enumerate(self.vm) if t in tags)
        if last <= self.done:
            return
        n = len(self.vm) - 1 - last
        assert n <= 63
        self.done = last
        self(f"s_waitcnt vmcnt({n})")
    def text(self):
        return "\n".join(self.lines) + "\n"

def vr(a, n=1):
    return f"v{a}" if n == 1 else f"v[{a}:{a+n-1}]"
def sr(a, n=1):
    return f"s{a}" if n == 1 else f"s[{a}:{a+n-1}]"

def gen_main(o, kname):
    R = o.ring
    nt = " nt" if o.nt else ""
    a = Asm()
    QP, SO, VS, VZ, CZ, T = 0, 16, 48, 64, 80, 84
    vK, vV, vM, vX = 92, 93, 94, 95
    RB = 96
    nvgpr = RB + 32 * R
    assert nvgpr <= 256
    sK, sV, sQ, sKS, sKZ, sVS, sVZ, sWS = 36, 40, 44, 48, 52, 56, 60, 64
    sW, sT0, sSm, sPair, sPerm, sC1, sHi = 4, 6, 10, 11, 12, 13, 14
    c1 = (128.0 ** -0.5) * math.log2(math.e)

    nst = [0]
    def stamp():
        if o.stamp:
            a(f"s_memrealtime s[{72+2*nst[0]}:{73+2*nst[0]}]")
            nst[0] += 1
    a.label(kname)
    a("s_cmp_ge_u32 s2, 256")
    a("s_cbranch_scc1 L_main_end")
    stamp()
    a(f"s_load_dwordx2 {sr(sK,2)}, s[0:1], 8")
    a("s_load_dwordx16 s[16:31], s[0:1], 0")
    a("s_load_dwordx4 s[32:35], s[0:1], 64")
    a(f"v_lshrrev_b32 v1, 6, v0")
    a(f"v_and_b32 v2, 15, v0")
    a(f"v_readfirstlane_b32 s3, v1")
    a(f"v_bfe_u32 v3, v0, 4, 2")
    a(f"s_mov_b32 {sr(sK+2)}, 0x8000000")
    a(f"s_mov_b32 {sr(sK+3)}, 0x20000")
    a(f"v_lshrrev_b32 v4, 2, v2")
    a(f"v_lshlrev_b32 v4, 12, v4")
    a(f"v_and_b32 v5, 3, v2")
    a(f"v_lshl_add_u32 v4, v5, 9, v4")
    if o.klayout == 0:
        a(f"v_lshl_add_u32 {vr(vK)}, v3, 5, v4")
    else:
        a(f"v_lshl_add_u32 {vr(vK)}, v3, 4, v4")
    if o.map == 0:
        a(f"s_lshl_b32 {sr(sW)}, s2, 3")
        a(f"s_add_u32 {sr(sW)}, {sr(sW)}, s3")
    elif o.map == 1:
        a(f"s_lshr_b32 s5, s2, 5")
        a(f"s_lshl_b32 s5, s5, 8")
        a(f"s_lshl_b32 {sr(sW)}, s3, 5")
        a(f"s_add_u32 {sr(sW)}, {sr(sW)}, s5")
        a(f"s_and_b32 s5, s2, 31")
        a(f"s_add_u32 {sr(sW)}, {sr(sW)}, s5")
    a(f"s_lshl_b32 {sr(sT0)}, {sr(sW)}, 16")
    a(f"s_add_u32 {sr(sT0+1)}, {sr(sT0)}, 0x4000")
    a(f"s_add_u32 {sr(sT0+2)}, {sr(sT0)}, 0x8000")
    a(f"s_add_u32 {sr(sT0+3)}, {sr(sT0)}, 0xc000")
    a(f"s_lshl_b32 {sr(sSm)}, {sr(sW)}, 8")
    a(f"s_lshr_b32 {sr(sPair)}, {sr(sW)}, 8")
    a(f"s_lshl_b32 {sr(sPair)}, {sr(sPair)}, 11")
    a(f"v_lshlrev_b32 v4, 4, v2")
    a(f"v_lshl_add_u32 {vr(vV)}, v3, 12, v4")
    if o.klayout == 0:
        a(f"v_lshlrev_b32 {vr(vX)}, 4, v3")
        a(f"v_and_b32 v5, 7, v2")
        a(f"v_lshl_add_u32 {vr(T)}, v5, 8, {vr(vX)}")
    else:
        a(f"v_lshlrev_b32 {vr(vX)}, 4, v3")
        a(f"v_lshlrev_b32 {vr(T+1)}, 3, v3")
        a(f"v_and_b32 v5, 7, v2")
        a(f"v_lshl_add_u32 {vr(T)}, v5, 8, {vr(T+1)}")
    a(f"v_lshrrev_b32 v5, 3, v2")
    a(f"v_sub_u32 v5, 0, v5")
    a(f"v_lshlrev_b32 {vr(vM)}, 16, v5")
    a(f"s_mov_b32 {sr(sPerm)}, 0x07060302")
    a(f"s_mov_b32 {sr(sC1)}, 0x{f32bits(c1):08x}")
    a(f"s_mov_b32 {sr(sHi)}, 0xffff0000")
    a("s_waitcnt lgkmcnt(0)")
    stamp()

    chunks = [("K", i) for i in range(8)] + [("V", i) for i in range(8)]
    def buf(ci):
        return RB + 32 * (ci % R)
    def issue(ci):
        kind, idx = chunks[ci]
        b = buf(ci)
        if kind == "K":
            j, u = idx >> 1, idx & 1
            for m in range(4):
                for h in range(2):
                    off = u * 2048 + m * 128 + (h * 16 if o.klayout == 0 else h * 64)
                    a.vmem(f"buffer_load_dwordx4 {vr(b + 8*m + 4*h, 4)}, {vr(vK)}, {sr(sK,4)}, {sr(sT0+j)} offen offset:{off}{nt}", ("c", ci))
        else:
            j, half = idx >> 1, idx & 1
            for e in range(8):
                off = e * 512 + half * 256
                a.vmem(f"buffer_load_dwordx4 {vr(b + 4*e, 4)}, {vr(vV)}, {sr(sV,4)}, {sr(sT0+j)} offen offset:{off}{nt}", ("c", ci))

    issue(0)
    def srd(d, p, size):
        a(f"s_mov_b32 {sr(d)}, {sr(p)}")
        a(f"s_mov_b32 {sr(d+1)}, {sr(p+1)}")
        a(f"s_mov_b32 {sr(d+2)}, 0x{size:x}")
        a(f"s_mov_b32 {sr(d+3)}, 0x20000")
    srd(sQ, 16, 16384)
    srd(sKS, 22, 524288)
    srd(sKZ, 24, 524288)
    if o.klayout == 0:
        for m in range(4):
            a.vmem(f"buffer_load_dwordx4 {vr(QP+4*m,4)}, {vr(T)}, {sr(sQ,4)}, {sr(sPair)} offen offset:{m*64}", "q")
        for m in range(4):
            a.vmem(f"buffer_load_dwordx4 {vr(SO+4*m,4)}, {vr(vX)}, {sr(sKS,4)}, {sr(sSm)} offen offset:{m*64}", "q")
        for m in range(4):
            a.vmem(f"buffer_load_dwordx4 {vr(SO+16+4*m,4)}, {vr(vX)}, {sr(sKZ,4)}, {sr(sSm)} offen offset:{m*64}", "q")
    else:
        for m in range(4):
            for h in range(2):
                a.vmem(f"buffer_load_dwordx2 {vr(QP+4*m+2*h,2)}, {vr(T)}, {sr(sQ,4)}, {sr(sPair)} offen offset:{m*64+h*32}", "q")
        for m in range(4):
            for h in range(2):
                a.vmem(f"buffer_load_dwordx2 {vr(SO+4*m+2*h,2)}, {vr(T+1)}, {sr(sKS,4)}, {sr(sSm)} offen offset:{m*64+h*32}", "q")
        for m in range(4):
            for h in range(2):
                a.vmem(f"buffer_load_dwordx2 {vr(SO+16+4*m+2*h,2)}, {vr(T+1)}, {sr(sKZ,4)}, {sr(sSm)} offen offset:{m*64+h*32}", "q")
    nfirst = R if o.klayout == 0 else min(R, 4)
    for ci in range(1, nfirst):
        issue(ci)
    srd(sV, 20, 0x8000000)
    srd(sVS, 26, 524288)
    srd(sVZ, 28, 524288)
    srd(sWS, 34, 0x20000000)
    def issue_vsz():
        for j in range(4):
            a.vmem(f"buffer_load_dwordx4 {vr(VS+4*j,4)}, {vr(vX)}, {sr(sVS,4)}, {sr(sSm)} offen offset:{j*64}", "vs")
        for j in range(4):
            a.vmem(f"buffer_load_dwordx4 {vr(VZ+4*j,4)}, {vr(vX)}, {sr(sVZ,4)}, {sr(sSm)} offen offset:{j*64}", "vs")
    if o.klayout == 0:
        issue_vsz()

    stamp()
    a.wait_vm({"q"})
    stamp()
    if o.klayout != 0:
        for ci in range(nfirst, R):
            issue(ci)
        issue_vsz()
    for k in range(16):
        q, s = QP + k, SO + k
        t0, t1, t2, t3 = T + 4*(k & 1), T + 4*(k & 1) + 1, T + 4*(k & 1) + 2, T + 4*(k & 1) + 3
        a(f"v_lshlrev_b32 {vr(t0)}, 16, {vr(q)}")
        a(f"v_lshlrev_b32 {vr(t1)}, 16, {vr(s)}")
        a(f"v_and_b32 {vr(t2)}, {sr(sHi)}, {vr(q)}")
        a(f"v_and_b32 {vr(t3)}, {sr(sHi)}, {vr(s)}")
        a(f"v_mul_f32 {vr(t0)}, {vr(t0)}, {vr(t1)}")
        a(f"v_mul_f32 {vr(t2)}, {vr(t2)}, {vr(t3)}")
        a(f"v_and_b32 {vr(t1)}, {vr(vM)}, {vr(t0)}")
        a(f"v_and_b32 {vr(t3)}, {vr(vM)}, {vr(t2)}")
        a(f"v_sub_f32 {vr(t0)}, {vr(t0)}, {vr(t1)}")
        a(f"v_sub_f32 {vr(t2)}, {vr(t2)}, {vr(t3)}")
        a(f"v_perm_b32 {vr(q)}, {vr(t2)}, {vr(t0)}, {sr(sPerm)}")
    a("s_nop 1")
    for m in range(4):
        c = "0" if m == 0 else vr(CZ, 4)
        a(f"v_mfma_f32_16x16x32_bf16 {vr(CZ,4)}, {vr(SO+16+4*m,4)}, {vr(QP+4*m,4)}, {c}")
    a("s_nop 7")
    for r in range(4):
        a(f"v_sub_f32 {vr(CZ+r)}, 0, {vr(CZ+r)}")

    for ci in range(8):
        b = buf(ci)
        a.wait_vm({("c", ci)})
        for x in range(32):
            a(f"v_cvt_f32_i32 {vr(b+x)}, {vr(b+x)}")
        for m in range(4):
            for k in range(4):
                a(f"v_cvt_pk_bf16_f32 {vr(b+8*m+k)}, {vr(b+8*m+2*k)}, {vr(b+8*m+2*k+1)}")
        for m in range(4):
            c = vr(CZ, 4) if m == 0 else vr(SO + 4*ci, 4)
            a(f"v_mfma_f32_16x16x32_bf16 {vr(SO+4*ci,4)}, {vr(b+8*m,4)}, {vr(QP+4*m,4)}, {c}")
        if ci + R < 16:
            issue(ci + R)
        if ci >= 1:
            for r in range(4):
                x = SO + 4*(ci-1) + r
                a(f"v_add_f32_dpp {vr(x)}, {vr(x)}, {vr(x)} row_ror:8 row_mask:0xf bank_mask:0xf")
    a("s_nop 7")
    for r in range(4):
        x = SO + 28 + r
        a(f"v_add_f32_dpp {vr(x)}, {vr(x)}, {vr(x)} row_ror:8 row_mask:0xf bank_mask:0xf")

    stamp()
    m0, m1 = T, T + 1
    a(f"v_max3_f32 {vr(m0)}, {vr(SO)}, {vr(SO+1)}, {vr(SO+2)}")
    a(f"v_max3_f32 {vr(m1)}, {vr(SO+3)}, {vr(SO+4)}, {vr(SO+5)}")
    x = 6
    while x < 32:
        a(f"v_max3_f32 {vr(m0)}, {vr(m0)}, {vr(SO+x)}, {vr(SO+x+1)}")
        if x + 2 < 32:
            a(f"v_max3_f32 {vr(m1)}, {vr(m1)}, {vr(SO+x+2)}, {vr(SO+x+3)}")
        x += 4
    a(f"v_max_f32 {vr(m0)}, {vr(m0)}, {vr(m1)}")
    a(f"v_mov_b32 {vr(m1)}, {vr(m0)}")
    a("s_nop 1")
    a(f"v_permlane32_swap_b32 {vr(m0)}, {vr(m1)}")
    a("s_nop 1")
    a(f"v_max_f32 {vr(m0)}, {vr(m0)}, {vr(m1)}")
    a(f"v_mov_b32 {vr(m1)}, {vr(m0)}")
    a("s_nop 1")
    a(f"v_permlane16_swap_b32 {vr(m0)}, {vr(m1)}")
    a("s_nop 1")
    a(f"v_max_f32 {vr(m0)}, {vr(m0)}, {vr(m1)}")
    LDS_M, LDS_L, LDS_O = 0, 256, 512
    HS, WSTR = 528, 528 * 8
    a(f"v_mbcnt_lo_u32_b32 {vr(T+2)}, -1, 0")
    a(f"v_mbcnt_hi_u32_b32 {vr(T+2)}, -1, {vr(T+2)}")
    a(f"v_and_b32 {vr(T+3)}, 7, {vr(T+2)}")
    a(f"v_lshlrev_b32 {vr(T+3)}, 5, {vr(T+3)}")
    a(f"s_lshl_b32 s5, s3, 2")
    a(f"v_add_u32 {vr(vX)}, s5, {vr(T+3)}")
    a(f"ds_write_b32 {vr(vX)}, {vr(m0)} offset:{LDS_M}")
    a("s_waitcnt lgkmcnt(0)")
    a("s_barrier")
    a(f"ds_read_b128 {vr(T+4,4)}, {vr(T+3)} offset:{LDS_M}")
    a(f"ds_read_b128 {vr(CZ,4)}, {vr(T+3)} offset:{LDS_M+16}")
    a("s_waitcnt lgkmcnt(0)")
    a(f"v_max3_f32 {vr(m0)}, {vr(T+4)}, {vr(T+5)}, {vr(T+6)}")
    a(f"v_max3_f32 {vr(m1)}, {vr(T+7)}, {vr(CZ)}, {vr(CZ+1)}")
    a(f"v_max3_f32 {vr(m0)}, {vr(m0)}, {vr(CZ+2)}, {vr(CZ+3)}")
    a(f"v_max_f32 {vr(m0)}, {vr(m0)}, {vr(m1)}")
    a(f"v_mul_f32 {vr(vK)}, {sr(sC1)}, {vr(m0)}")
    assert 8 - 1 + R >= 8
    for x in range(32):
        a(f"v_fma_f32 {vr(SO+x)}, {vr(SO+x)}, {sr(sC1)}, -{vr(vK)}")
    for x in range(32):
        a(f"v_exp_f32 {vr(SO+x)}, {vr(SO+x)}")
    l0, l1 = T, T + 1
    a(f"v_add_f32 {vr(l0)}, {vr(SO)}, {vr(SO+1)}")
    a(f"v_add_f32 {vr(l1)}, {vr(SO+2)}, {vr(SO+3)}")
    for x in range(4, 32, 2):
        a(f"v_add_f32 {vr(l0)}, {vr(l0)}, {vr(SO+x)}")
        a(f"v_add_f32 {vr(l1)}, {vr(l1)}, {vr(SO+x+1)}")
    a(f"v_add_f32 {vr(l0)}, {vr(l0)}, {vr(l1)}")
    a(f"v_mov_b32 {vr(l1)}, {vr(l0)}")
    a("s_nop 1")
    a(f"v_permlane32_swap_b32 {vr(l0)}, {vr(l1)}")
    a("s_nop 1")
    a(f"v_add_f32 {vr(l0)}, {vr(l0)}, {vr(l1)}")
    a(f"v_mov_b32 {vr(l1)}, {vr(l0)}")
    a("s_nop 1")
    a(f"v_permlane16_swap_b32 {vr(l0)}, {vr(l1)}")
    a("s_nop 1")
    a(f"v_add_f32 {vr(l0)}, {vr(l0)}, {vr(l1)}")
    a(f"ds_write_b32 {vr(vX)}, {vr(l0)} offset:{LDS_L}")
    a.wait_vm({"vs"})
    for k in range(16):
        p0, p1 = SO + 2*k, SO + 2*k + 1
        t0, t1 = T + 2*(k & 3), T + 2*(k & 3) + 1
        a(f"v_lshlrev_b32 {vr(t0)}, 16, {vr(VS+k)}")
        a(f"v_and_b32 {vr(t1)}, {sr(sHi)}, {vr(VS+k)}")
        a(f"v_mul_f32 {vr(p0)}, {vr(p0)}, {vr(t0)}")
        a(f"v_mul_f32 {vr(p1)}, {vr(p1)}, {vr(t1)}")
        a(f"v_and_b32 {vr(t0)}, {vr(vM)}, {vr(p0)}")
        a(f"v_and_b32 {vr(t1)}, {vr(vM)}, {vr(p1)}")
        a(f"v_sub_f32 {vr(p0)}, {vr(p0)}, {vr(t0)}")
        a(f"v_sub_f32 {vr(p1)}, {vr(p1)}, {vr(t1)}")
        a(f"v_perm_b32 {vr(QP+k)}, {vr(p1)}, {vr(p0)}, {sr(sPerm)}")
    a("s_nop 1")
    for j in range(4):
        c = "0" if j == 0 else vr(CZ, 4)
        a(f"v_mfma_f32_16x16x32_bf16 {vr(CZ,4)}, {vr(VZ+4*j,4)}, {vr(QP+4*j,4)}, {c}")
    eLane, eW, eR, eG, eZ = VS, VS + 1, VS + 2, VS + 3, VS + 4
    a(f"v_mbcnt_lo_u32_b32 {vr(eLane)}, -1, 0")
    a(f"v_mbcnt_hi_u32_b32 {vr(eLane)}, -1, {vr(eLane)}")
    a(f"v_and_b32 {vr(eW)}, 7, {vr(eLane)}")
    a(f"v_mul_u32_u24 {vr(eW)}, {HS}, {vr(eW)}")
    a(f"v_bfe_u32 {vr(eR)}, {vr(eLane)}, 3, 1")
    a(f"v_lshl_add_u32 {vr(eW)}, {vr(eR)}, 8, {vr(eW)}")
    a(f"v_lshrrev_b32 {vr(eR)}, 4, {vr(eLane)}")
    a(f"v_lshl_add_u32 {vr(eW)}, {vr(eR)}, 6, {vr(eW)}")
    a(f"s_mul_i32 s5, s3, {WSTR}")
    a(f"v_add_u32 {vr(eW)}, s5, {vr(eW)}")
    a(f"s_mul_i32 s5, s3, {HS}")
    a(f"v_lshlrev_b32 {vr(eR)}, 3, {vr(eLane)}")
    a(f"v_add_u32 {vr(eR)}, s5, {vr(eR)}")
    a(f"s_lshl_b32 s5, s2, 3")
    a(f"s_add_u32 s5, s5, s3")
    a(f"s_lshl_b32 s5, s5, 10")
    a(f"v_lshlrev_b32 {vr(eG)}, 4, {vr(eLane)}")
    a(f"v_add_u32 {vr(eG)}, s5, {vr(eG)}")
    a(f"v_cmp_ne_u32 s[68:69], 0, {vr(vM)}")
    a("s_nop 3")
    a(f"v_add_f32_dpp {vr(eZ)}, {vr(CZ)}, {vr(CZ)} row_ror:8 row_mask:0xf bank_mask:0xf")

    stamp()
    for idx in range(8):
        ci = 8 + idx
        j, half = idx >> 1, idx & 1
        b = buf(ci)
        a.wait_vm({("c", ci)})
        for x in range(32):
            a(f"v_cvt_f32_i32 {vr(b+x)}, {vr(b+x)}")
        def pk(c):
            t = T + 4 * (c & 1)
            for p in range(4):
                a(f"v_cvt_pk_bf16_f32 {vr(t+p)}, {vr(b+8*p+c)}, {vr(b+8*p+4+c)}")
        def mf(c):
            t = T + 4 * (c & 1)
            acc = SO + 16*half + 4*c
            cc = "0" if j == 0 else vr(acc, 4)
            a(f"v_mfma_f32_16x16x32_bf16 {vr(acc,4)}, {vr(t,4)}, {vr(QP+4*j,4)}, {cc}")
        pk(0); pk(1); mf(0); pk(2); mf(1); pk(3); mf(2); a("s_nop 0"); mf(3)
        if ci + R < 16:
            issue(ci + R)

    stamp()
    a("s_nop 7")
    E = RB
    for r in range(4):
        for c in range(4):
            a0, a1 = SO + 4*c + r, SO + 16 + 4*c + r
            x, y = E + 4*r + c, E + 16 + 4*r + c
            a(f"v_cndmask_b32 {vr(x)}, {vr(a0)}, {vr(a1)}, s[68:69]")
            a(f"v_cndmask_b32 {vr(y)}, {vr(a1)}, {vr(a0)}, s[68:69]")
    for r in range(4):
        for c in range(4):
            x = E + 4*r + c
            a(f"v_sub_f32 {vr(x)}, {vr(x)}, {vr(eZ)}")
    for r in range(4):
        for c in range(4):
            x, y = E + 4*r + c, E + 16 + 4*r + c
            a(f"v_add_f32_dpp {vr(x)}, {vr(y)}, {vr(x)} row_ror:8 row_mask:0xf bank_mask:0xf")
        a(f"ds_write_b128 {vr(eW)}, {vr(E+4*r,4)} offset:{LDS_O + 16*r}")
    a("s_lshl_b32 s5, s3, 5")
    a(f"v_mov_b32 {vr(T)}, s5")
    a("s_waitcnt lgkmcnt(0)")
    a("s_barrier")
    F = RB + 32
    for w in range(8):
        a(f"ds_read_b64 {vr(F+2*w,2)}, {vr(eR)} offset:{LDS_O + w*WSTR}")
    a(f"ds_read_b128 {vr(F+16,4)}, {vr(T)} offset:{LDS_L}")
    a(f"ds_read_b128 {vr(F+20,4)}, {vr(T)} offset:{LDS_L+16}")
    a(f"v_readlane_b32 s5, {vr(vK)}, s3")
    a("s_waitcnt lgkmcnt(0)")
    a(f"v_add_f32 {vr(F+16)}, {vr(F+16)}, {vr(F+17)}")
    a(f"v_add_f32 {vr(F+18)}, {vr(F+18)}, {vr(F+19)}")
    a(f"v_add_f32 {vr(F+20)}, {vr(F+20)}, {vr(F+21)}")
    a(f"v_add_f32 {vr(F+22)}, {vr(F+22)}, {vr(F+23)}")
    a(f"v_add_f32 {vr(F+16)}, {vr(F+16)}, {vr(F+18)}")
    a(f"v_add_f32 {vr(F+20)}, {vr(F+20)}, {vr(F+22)}")
    a(f"v_add_f32 {vr(F+16)}, {vr(F+16)}, {vr(F+20)}")
    a(f"v_rcp_f32 {vr(F+17)}, {vr(F+16)}")
    a(f"v_log_f32 {vr(F+18)}, {vr(F+16)}")
    for s in (4, 2, 1):
        for w in range(s):
            a(f"v_pk_add_f32 {vr(F+2*w,2)}, {vr(F+2*w,2)}, {vr(F+2*(w+s),2)}")
    a(f"v_mul_f32 {vr(F+24)}, {vr(F)}, {vr(F+17)}")
    a(f"v_mul_f32 {vr(F+25)}, {vr(F+1)}, {vr(F+17)}")
    a(f"v_add_f32 {vr(F+26)}, s5, {vr(F+18)}")
    a(f"v_mov_b32 {vr(F+27)}, 0")
    a.vmem(f"buffer_store_dwordx4 {vr(F+24,4)}, {vr(eG)}, {sr(sWS,4)}, 0 offen", "st")
    if o.stamp:
        stamp()
        a("s_waitcnt lgkmcnt(0)")
        a("s_getreg_b32 s5, hwreg(HW_REG_XCC_ID)")
        a("s_lshl_b32 s4, s2, 3")
        a("s_add_u32 s4, s4, s3")
        a("s_lshl_b32 s4, s4, 6")
        a("s_add_u32 s4, s4, 0x4000000")
        for i in range(8):
            a(f"v_mov_b32 v{i}, s{72+2*i}")
        a("v_mov_b32 v8, s5")
        a("v_mov_b32 v12, 0")
        a("s_mov_b64 exec, 1")
        a(f"buffer_store_dwordx4 v[0:3], v12, {sr(sWS,4)}, s4 offen")
        a(f"buffer_store_dwordx4 v[4:7], v12, {sr(sWS,4)}, s4 offen offset:16")
        a(f"buffer_store_dword v8, v12, {sr(sWS,4)}, s4 offen offset:32")
    a.label("L_main_end")
    a("s_endpgm")
    lds = LDS_O + 8 * WSTR
    return a.text(), nvgpr, lds

def gen_combine(o, kname):
    a = Asm()
    a.label(kname)
    a("s_cmp_ge_u32 s2, 256")
    a("s_cbranch_scc1 L_comb_end")
    a("s_load_dwordx2 s[8:9], s[0:1], 72")
    a("s_load_dwordx2 s[12:13], s[0:1], 56")
    a("s_mov_b32 s10, 0x20000000")
    a("s_mov_b32 s11, 0x20000")
    a("s_mov_b32 s14, 16384")
    a("s_mov_b32 s15, 0x20000")
    a("v_and_b32 v1, 31, v0")
    a("v_lshlrev_b32 v1, 13, v1")
    a("v_lshrrev_b32 v2, 5, v0")
    a("v_lshl_add_u32 v1, v2, 4, v1")
    a("s_lshr_b32 s3, s2, 5")
    a("s_lshl_b32 s3, s3, 18")
    a("s_and_b32 s4, s2, 31")
    a("s_lshl_b32 s5, s4, 8")
    a("s_add_u32 s3, s3, s5")
    a("s_lshl_b32 s5, s2, 6")
    a("v_lshlrev_b32 v2, 2, v2")
    a("s_waitcnt lgkmcnt(0)")
    a("buffer_load_dwordx4 v[4:7], v1, s[8:11], s3 offen")
    a("s_waitcnt vmcnt(0)")
    emit_reduce(a, 4, 8)
    a("v_and_b32 v3, 31, v0")
    a("v_cmp_eq_u32 vcc, 0, v3")
    a("s_and_saveexec_b64 s[16:17], vcc")
    a("buffer_store_dword v8, v2, s[12:15], s5 offen")
    a.label("L_comb_end")
    a("s_endpgm")
    return a.text(), 16

def emit_reduce(a, g, t):
    o0, o1, ls = g, g + 1, g + 2
    m, w = t, t + 1
    def allred(op, x, tmp):
        for mod in ("quad_perm:[1,0,3,2]", "quad_perm:[2,3,0,1]", "row_half_mirror", "row_mirror"):
            a("s_nop 1")
            a(f"{op}_dpp {vr(x)}, {vr(x)}, {vr(x)} {mod} row_mask:0xf bank_mask:0xf")
        a(f"v_mov_b32 {vr(tmp)}, {vr(x)}")
        a("s_nop 1")
        a(f"v_permlane16_swap_b32 {vr(x)}, {vr(tmp)}")
        a("s_nop 1")
        a(f"{op} {vr(x)}, {vr(x)}, {vr(tmp)}")
    a(f"v_mov_b32 {vr(m)}, {vr(ls)}")
    allred("v_max_f32", m, t + 2)
    a(f"v_sub_f32 {vr(w)}, {vr(ls)}, {vr(m)}")
    a(f"v_exp_f32 {vr(w)}, {vr(w)}")
    a("s_nop 0")
    a(f"v_mul_f32 {vr(o0)}, {vr(o0)}, {vr(w)}")
    a(f"v_mul_f32 {vr(o1)}, {vr(o1)}, {vr(w)}")
    for mod in ("quad_perm:[1,0,3,2]", "quad_perm:[2,3,0,1]", "row_half_mirror", "row_mirror"):
        for x in (w, o0, o1):
            a(f"v_add_f32_dpp {vr(x)}, {vr(x)}, {vr(x)} {mod} row_mask:0xf bank_mask:0xf")
    tm = {w: t + 2, o0: t + 3, o1: ls}
    for x in (w, o0, o1):
        a(f"v_mov_b32 {vr(tm[x])}, {vr(x)}")
    a("s_nop 1")
    for x in (w, o0, o1):
        a(f"v_permlane16_swap_b32 {vr(x)}, {vr(tm[x])}")
    a("s_nop 1")
    for x in (w, o0, o1):
        a(f"v_add_f32 {vr(x)}, {vr(x)}, {vr(tm[x])}")
    a(f"v_rcp_f32 {vr(w)}, {vr(w)}")
    a("s_nop 0")
    a(f"v_mul_f32 {vr(o0)}, {vr(o0)}, {vr(w)}")
    a(f"v_mul_f32 {vr(o1)}, {vr(o1)}, {vr(w)}")
    a(f"v_cvt_pk_bf16_f32 {vr(t)}, {vr(o0)}, {vr(o1)}")

def kd(name, nvgpr, nsgpr):
    acc = min(256, (nvgpr + 3) // 4 * 4)
    return f""".amdhsa_kernel {name}
  .amdhsa_next_free_vgpr {nvgpr}
  .amdhsa_next_free_sgpr {nsgpr}
  .amdhsa_accum_offset {acc}
  .amdhsa_group_segment_fixed_size 0
  .amdhsa_kernarg_size 80
  .amdhsa_user_sgpr_count 2
  .amdhsa_user_sgpr_kernarg_segment_ptr 1
  .amdhsa_system_sgpr_workgroup_id_x 1
.end_amdhsa_kernel
"""

def main():
    ap = argparse.ArgumentParser()
    ap.add_argument("-o", default="/dev/stdout")
    ap.add_argument("--ring", type=int, default=5)
    ap.add_argument("--nt", type=int, default=0)
    ap.add_argument("--klayout", type=int, default=0)
    ap.add_argument("--map", type=int, default=0)
    ap.add_argument("--stamp", type=int, default=0)
    o = ap.parse_args()
    k1 = NAME + "_kernel"
    k2 = "combine_kernel"
    body1, nv1, lds1 = gen_main(o, k1)
    body2, nv2 = gen_combine(o, k2)
    s = HEADER
    s += f"; @launch kernel={k1} grid=(256,1,1) block=(512,1,1) lds={lds1}\n"
    s += f"; @launch kernel={k2} grid=(256,1,1) block=(512,1,1) lds=0\n"
    s += '.amdgcn_target "amdgcn-amd-amdhsa--gfx950"\n.text\n'
    for k, body in ((k1, body1), (k2, body2)):
        s += f".globl {k}\n.p2align 8\n.type {k},@function\n{body}"
    s += "    .fill 256, 4, 0xbf800000\n" if False else ""
    s += '.section .rodata,"a"\n.p2align 6\n'
    s += kd(k1, 256 if o.ring >= 5 else max(nv1, 176), 96)
    s += ".p2align 6\n"
    s += kd(k2, nv2, 24)
    open(o.o, "w").write(s)

if __name__ == "__main__":
    main()
```

```python
import sys, math, struct, argparse
from gen import HEADER, NAME, Asm, vr, sr, f32bits, kd

DPP = "row_mask:0xf bank_mask:0xf"
NC = 16

def gen_main(o, kname):
    R = o.ring
    U = o.unit
    nt = " nt"
    a = Asm()
    Q, OX, S, CZ, T, KF, KR = 0, 16, 32, 96, 100, 116, 124
    O = 0
    vKa, vKb, vV, vW, vR, vM, vS8, vG8 = 128, 129, 130, 131, 132, 133, 134, 135
    NV = 136
    PP = 144
    SZ = 148
    RB = 160
    mx0, mx1, vL, vV2 = 156, 157, 158, 159
    nvgpr = RB + 4 * U * R
    assert nvgpr <= 256, nvgpr
    sK, sV, sQ, sSM, sWS, sDBG, sOUT = 36, 40, 44, 48, 52, 56, 60
    sA = 4
    sB0, sB1 = 5, 6
    sPerm, sC1, sHi, sPair = 12, 13, 14, 15
    sT1, sT2, sT3, sWgp = 64, 65, 66, 67
    sMask = 68
    sNon = 70
    c1 = (128.0 ** -0.5) * math.log2(math.e)
    RS = 288
    WREG = 16 * RS
    LDS_S = 4 * WREG
    LDS_Q = LDS_S + 8192
    LDS_M = LDS_Q + 2048
    LDS_L = LDS_M + 128
    LDS_N = LDS_L + 128
    HS = 528
    def coff(c):
        return ((c & 3) << 15) | ((c >> 2) << 22)

    nst = [0]
    def stamp():
        if o.stamp:
            a(f"s_memrealtime s[{72+2*nst[0]}:{73+2*nst[0]}]")
            nst[0] += 1
    def srd_tail(d, size):
        a(f"s_mov_b32 {sr(d+2)}, 0x{size:x}")
        a(f"s_mov_b32 {sr(d+3)}, 0x20000")

    a.label(kname)
    a("s_cmp_ge_u32 s2, 256")
    a("s_cbranch_scc1 L_main_end")
    stamp()
    a(f"v_lshrrev_b32 v1, 6, v0")
    a(f"s_load_dwordx2 {sr(sK,2)}, s[0:1], 8")
    a(f"v_readfirstlane_b32 s3, v1")
    a(f"s_load_dwordx2 {sr(sQ,2)}, s[0:1], 0")
    a(f"s_load_dwordx2 {sr(sDBG,2)}, s[0:1], 64")
    a(f"v_and_b32 v2, 63, v0")
    a(f"s_lshl_b32 {sr(sT2)}, s3, 3")
    a(f"s_add_u32 {sr(sT2)}, {sr(sT2)}, 24")
    a(f"s_load_dwordx2 {sr(sSM,2)}, s[0:1], {sr(sT2)}")
    a(f"s_memrealtime {sr(sNon,2)}")
    if o.tlb:
        a(f"s_load_dwordx2 {sr(sV,2)}, s[0:1], 16")
        a(f"s_load_dwordx2 {sr(sWS,2)}, s[0:1], 72")
        a(f"s_load_dwordx2 {sr(sOUT,2)}, s[0:1], 56")
        srd_tail(sV, 0x8000000)
        srd_tail(sWS, 0x20000000)
        srd_tail(sOUT, 16384)
    a(f"v_lshlrev_b32 {vr(vKa)}, 4, v2")
    a(f"v_add_u32 {vr(vKb)}, 0x1000, {vr(vKa)}")
    srd_tail(sK, 0x8000000)
    srd_tail(sSM, 524288)
    srd_tail(sQ, 16384)
    srd_tail(sDBG, 256)
    if o.thr >= 0:
        a("s_getreg_b32 s23, hwreg(HW_REG_XCC_ID)")
    a(f"s_lshr_b32 {sr(sPair)}, s2, 5")
    a(f"s_and_b32 {sr(sWgp)}, s2, 31")
    a(f"s_lshl_b32 {sr(sA)}, {sr(sPair)}, 24")
    a(f"s_lshl_b32 {sr(sT2)}, {sr(sWgp)}, 17")
    a(f"s_or_b32 {sr(sA)}, {sr(sA)}, {sr(sT2)}")
    a(f"s_lshr_b32 {sr(sT3)}, {sr(sA)}, 8")
    a(f"s_lshl_b32 {sr(sT2)}, s3, {10 if o.ilv else 13}")
    a(f"s_or_b32 {sr(sA)}, {sr(sA)}, {sr(sT2)}")
    a(f"v_and_b32 v3, 31, v2")
    a(f"v_lshrrev_b32 v7, 5, v2")
    a(f"v_lshlrev_b32 v6, 14, v7")
    a(f"v_lshl_add_u32 {vr(T)}, v3, 4, v6")
    a(f"v_mov_b32 {vr(NV+1)}, 0")
    a(f"v_mov_b32 {vr(NV+2)}, 0")
    a(f"s_lshl_b32 {sr(sT1)}, s3, 11")
    a(f"s_add_u32 m0, {sr(sT1)}, {LDS_S}")
    a("s_waitcnt lgkmcnt(0)")
    stamp()

    upc = 8 // U
    units = [("K", c, h) for c in range(NC) for h in range(upc)] + [("V", c, h) for c in range(NC) for h in range(upc)]
    def ubuf(ui):
        return RB + 4 * U * (ui % R)
    def issue(ui):
        if ui >= len(units):
            return
        kind, c, h = units[ui]
        b = ubuf(ui)
        if o.thr >= 0 and o.thr0 <= ui < o.thr1:
            if o.thrall:
                a(f"s_waitcnt vmcnt({o.thr})")
                if o.bar and ui % o.bar == 0 and ui < o.bar1:
                    a("s_barrier")
            elif o.thro >= 0:
                a(f"s_waitcnt vmcnt({o.thro})")
                if ui % o.thrm == 0:
                    a("s_bitcmp1_b32 s23, 0")
                    a(f"s_cbranch_scc1 L_thr{ui}")
                    a(f"s_waitcnt vmcnt({o.thr})")
                    a.label(f"L_thr{ui}")
            else:
                a("s_bitcmp1_b32 s23, 0")
                a(f"s_cbranch_scc1 L_thr{ui}")
                a(f"s_waitcnt vmcnt({o.thr})")
                a.label(f"L_thr{ui}")
        if o.ilv and kind == "K":
            for i in range(U):
                n = h * U + i
                off = coff(c) + (n >> 1) * 8192
                if (n & 1) == 0:
                    if off == 0:
                        sb = sA
                    else:
                        sb = sB0 if ((n >> 1) & 1) == 0 else sB1
                        a(f"s_add_u32 {sr(sb)}, {sr(sA)}, 0x{off:x}")
                va = vKa if (n & 1) == 0 else vKb
                a.vmem(f"buffer_load_dwordx4 {vr(b + 4*i, 4)}, {vr(va)}, {sr(sK,4)}, {sr(sb)} offen{nt}", (ui, i))
            return
        if c == 0:
            sb = sA
        else:
            sb = sB0 if (ui & 1) == 0 else sB1
            a(f"s_add_u32 {sr(sb)}, {sr(sA)}, 0x{coff(c):x}")
        for i in range(U):
            n = h * U + i
            if kind == "K":
                va = vKa if n < 4 else vKb
                a.vmem(f"buffer_load_dwordx4 {vr(b + 4*i, 4)}, {vr(va)}, {sr(sK,4)}, {sr(sb)} offen offset:{(n&3)*1024}{nt}", (ui, i))
            elif o.ilv:
                half, e = n >> 2, n & 3
                va = vV if e < 2 else vV2
                a.vmem(f"buffer_load_dwordx4 {vr(b + 4*i, 4)}, {vr(va)}, {sr(sV,4)}, {sr(sb)} offen offset:{(e&1)*512+half*256}{nt}", (ui, i))
            elif o.vco:
                va = vKa if n < 4 else vKb
                a.vmem(f"buffer_load_dwordx4 {vr(b + 4*i, 4)}, {vr(va)}, {sr(sV,4)}, {sr(sb)} offen offset:{(n&3)*1024}{nt}", (ui, i))
            else:
                half, e = n >> 2, n & 3
                a.vmem(f"buffer_load_dwordx4 {vr(b + 4*i, 4)}, {vr(vV)}, {sr(sV,4)}, {sr(sb)} offen offset:{e*512+half*256}{nt}", (ui, i))
    def reg(kind_base_ui, n):
        return ubuf(kind_base_ui + n // U) + 4 * (n % U)

    def nonce_atomic():
        a(f"s_lshl_b32 {sr(sT1)}, {sr(sPair)}, 5")
        a("s_cmp_lg_u32 s3, 3")
        a("s_cbranch_scc1 L_no_nonce")
        a(f"s_or_b32 {sr(sNon)}, {sr(sNon)}, 1")
        a(f"v_mov_b32 {vr(NV)}, {sr(sNon)}")
        a("s_mov_b64 exec, 1")
        a(f"buffer_atomic_cmpswap {vr(NV,2)}, {vr(NV+2)}, {sr(sDBG,4)}, {sr(sT1)} offen sc0")
        a("s_mov_b64 exec, -1")
        a.label("L_no_nonce")
    if o.nodma:
        _vm = a.vmem
        def vm2(t, tag):
            if tag == "sm" and (o.nodma & 1):
                return
            _vm(t, tag)
        a.vmem = vm2
        if o.nodma & 2:
            a.mute = ("buffer_atomic",)
    if o.start:
        if o.start == 2:
            nonce_atomic()
        issue(0); issue(1)
        if o.start == 1:
            nonce_atomic()
    else:
        if o.nat < 0:
            nonce_atomic()
        if o.kfirst:
            issue(0)
    a.vmem(f"buffer_load_dwordx4 {vr(T)}, {sr(sSM,4)}, {sr(sT3)} offen{' nt' if o.smnt else ''} lds", "sm")
    a(f"s_add_u32 m0, m0, 1024")
    a(f"s_add_u32 {sr(sT3)}, {sr(sT3)}, 0x8000")
    a.vmem(f"buffer_load_dwordx4 {vr(T)}, {sr(sSM,4)}, {sr(sT3)} offen{' nt' if o.smnt else ''} lds", "sm")
    a(f"s_lshl_b32 {sr(sT2)}, s3, 9")
    a(f"s_add_u32 m0, {sr(sT2)}, {LDS_Q}")
    a(f"s_lshl_b32 {sr(sT3)}, {sr(sPair)}, 11")
    a(f"s_add_u32 {sr(sT3)}, {sr(sT3)}, {sr(sT2)}")
    a("s_mov_b32 exec_hi, 0")
    a.vmem(f"buffer_load_dwordx4 {vr(vKa)}, {sr(sQ,4)}, {sr(sT3)} offen lds", "sm")
    a("s_mov_b32 exec_hi, -1")
    if o.tlb:
        a(f"s_lshl_b32 {sr(sT1)}, s3, 22")
        a(f"s_add_u32 {sr(sT1)}, {sr(sT1)}, {sr(sA)}")
        a("s_mov_b64 exec, 1")
        a.vmem(f"buffer_load_dword {vr(S+56)}, {vr(vKa)}, {sr(sV,4)}, {sr(sT1)} offen nt", "tlb")
        a.vmem(f"buffer_load_dword {vr(S+57)}, {vr(vKa)}, {sr(sK,4)}, {sr(sT1)} offen nt", "tlb")
        if o.tlb >= 2:
            a.vmem(f"buffer_load_dword {vr(S+58)}, {vr(vKa)}, {sr(sWS,4)}, 0 offen", "tlb")
            a.vmem(f"buffer_load_dword {vr(S+59)}, {vr(vKa)}, {sr(sOUT,4)}, 0 offen", "tlb")
        a("s_mov_b64 exec, -1")
    if o.cpf:
        a("s_getpc_b64 s[24:25]")
        a.label("L_pc")
        a(f"s_sub_u32 s24, s24, L_pc-{kname}")
        a("s_subb_u32 s25, s25, 0")
        a(f"s_lshr_b32 {sr(sT1)}, s2, 3")
        a(f"s_lshl_b32 {sr(sT1)}, {sr(sT1)}, 2")
        a(f"s_add_u32 {sr(sT1)}, {sr(sT1)}, s3")
        a(f"s_and_b32 {sr(sT1)}, {sr(sT1)}, {o.cpm - 1}")
        a(f"s_mul_i32 {sr(sT1)}, {sr(sT1)}, {o.cpf * 1024}")
        a(f"s_min_u32 {sr(sT1)}, {sr(sT1)}, L_main_end-{kname}-{o.cpf*1024}")
        a(f"v_add_u32 {vr(S+60)}, {sr(sT1)}, {vr(vKa)}")
        for i in range(o.cpf):
            a.vmem(f"global_load_dwordx4 {vr(S+56,4)}, {vr(S+60)}, s[24:25] offset:{i*1024}", "cpf")
    npre = min(R, o.pre)
    if not o.start:
        for ui in range(1 if o.kfirst else 0, npre):
            issue(ui)
    if not o.tlb:
        a(f"s_load_dwordx2 {sr(sV,2)}, s[0:1], 16")
        a(f"s_load_dwordx2 {sr(sWS,2)}, s[0:1], 72")
        a(f"s_load_dwordx2 {sr(sOUT,2)}, s[0:1], 56")
    a(f"v_lshrrev_b32 v4, 4, v2")
    a(f"v_and_b32 v5, 15, v2")
    a(f"v_lshlrev_b32 v6, 4, v5")
    a(f"v_lshl_add_u32 {vr(vV)}, v4, {13 if o.ilv else 11}, v6")
    a(f"v_add_u32 {vr(vV2)}, 0x1000, {vr(vV)}")
    a(f"v_lshlrev_b32 {vr(vS8)}, 3, v3")
    a(f"s_lshl_b32 {sr(sT1)}, s3, {2 if o.ilv else 5}")
    a(f"v_lshlrev_b32 v6, {5 if o.ilv else 3}, v4")
    a(f"v_add_u32 {vr(vG8)}, {sr(sT1)}, v6")
    a(f"v_and_b32 v9, 7, v2")
    a(f"v_lshlrev_b32 v6, 8, v9")
    a(f"v_lshl_add_u32 {vr(T+1)}, v4, 4, v6")
    a(f"s_mul_i32 {sr(sT1)}, s3, {WREG}")
    a(f"v_mul_u32_u24 v6, {RS}, v7")
    a(f"v_add3_u32 {vr(vW)}, v6, {vr(vS8)}, {sr(sT1)}")
    a(f"v_mul_u32_u24 v6, {RS}, v5")
    a(f"v_lshl_add_u32 v6, v4, 4, v6")
    a(f"v_add_u32 {vr(vR)}, {sr(sT1)}, v6")
    a(f"v_lshrrev_b32 v6, 3, v5")
    a(f"v_sub_u32 v6, 0, v6")
    a(f"v_lshlrev_b32 {vr(vM)}, 16, v6")
    srd_tail(sV, 0x8000000)
    srd_tail(sWS, 0x20000000)
    srd_tail(sOUT, 16384)
    a(f"s_mov_b32 {sr(sPerm)}, 0x07060302")
    a(f"s_mov_b32 {sr(sC1)}, 0x{f32bits(c1):08x}")
    a(f"s_mov_b32 {sr(sHi)}, 0xffff0000")
    a(f"v_cmp_ne_u32 {sr(sMask,2)}, 0, {vr(vM)}")
    stamp()
    if o.start:
        npre = 3
        a(f"s_waitcnt vmcnt({o.thr + 3})")
        sv = o.thr0; o.thr0 = 3
        issue(2)
        o.thr0 = sv
    if not (o.nodma & 1):
        a.wait_vm({"sm"})
    if not (o.nodma & 4):
        a("s_barrier")
    for m in range(4):
        a(f"ds_read_b128 {vr(Q+4*m,4)}, {vr(T+1)} offset:{LDS_Q + m*64}")
    def read_ks(c):
        off = (c >> 2) * 512 + ((c >> 1) & 1) * 256
        a(f"ds_read_b64 {vr(KR,2)}, {vr(vS8)} offset:{LDS_S + off}")
        a(f"ds_read_b64 {vr(KR+2,2)}, {vr(vS8)} offset:{LDS_S + 2048 + off}")
    def read_sz(c):
        off = (c >> 2) * 512 + (c & 3) * 128
        z = SZ + 4 * (c & 1)
        if o.ilv:
            a(f"ds_read_b32 {vr(z)}, {vr(vG8)} offset:{LDS_S + 4096 + off}")
            a(f"ds_read_b32 {vr(z+1)}, {vr(vG8)} offset:{LDS_S + 4096 + off + 16}")
            a(f"ds_read_b32 {vr(z+2)}, {vr(vG8)} offset:{LDS_S + 6144 + off}")
            a(f"ds_read_b32 {vr(z+3)}, {vr(vG8)} offset:{LDS_S + 6144 + off + 16}")
        else:
            a(f"ds_read_b64 {vr(z,2)}, {vr(vG8)} offset:{LDS_S + 4096 + off}")
            a(f"ds_read_b64 {vr(z+2,2)}, {vr(vG8)} offset:{LDS_S + 6144 + off}")
    read_ks(0)
    for ui in range(npre, R):
        issue(ui)

    MK = {0: (), 1: ("v_", "ds_", "s_nop", "s_waitcnt lgkm"), 2: ("ds_", "s_waitcnt lgkm"), 3: ("v_",)}
    a.mute = MK[o.mutek]
    for c in range(NC):
        u0 = c * upc
        if (c & 1) == 0:
            a("s_waitcnt lgkmcnt(0)")
            a(f"v_lshlrev_b32 {vr(KF)}, 16, {vr(KR)}")
            a(f"v_and_b32 {vr(KF+1)}, {sr(sHi)}, {vr(KR)}")
            a(f"v_lshlrev_b32 {vr(KF+2)}, 16, {vr(KR+1)}")
            a(f"v_and_b32 {vr(KF+3)}, {sr(sHi)}, {vr(KR+1)}")
            a(f"v_lshlrev_b32 {vr(KF+4)}, 16, {vr(KR+2)}")
            a(f"v_and_b32 {vr(KF+5)}, {sr(sHi)}, {vr(KR+2)}")
            a(f"v_lshlrev_b32 {vr(KF+6)}, 16, {vr(KR+3)}")
            a(f"v_and_b32 {vr(KF+7)}, {sr(sHi)}, {vr(KR+3)}")
            for k in range(4):
                a(f"v_mul_f32 {vr(KF+4+k)}, -{vr(KF+4+k)}, {vr(KF+k)}")
        if c >= 2:
            s0 = S + 4*(c-2)
            if c == 2:
                a(f"v_max_f32 {vr(mx0)}, {vr(s0)}, {vr(s0+1)}")
                a(f"v_max_f32 {vr(mx1)}, {vr(s0+2)}, {vr(s0+3)}")
            else:
                a(f"v_max3_f32 {vr(mx0)}, {vr(mx0)}, {vr(s0)}, {vr(s0+1)}")
                a(f"v_max3_f32 {vr(mx1)}, {vr(mx1)}, {vr(s0+2)}, {vr(s0+3)}")
        for n in range(8):
            if n % o.ksub == 0:
                nn = n + o.ksub - 1
                a.wait_vm({(u0 + nn // U, nn % U)})
                if c == 0 and n == 0:
                    stamp()
            x = reg(u0, n)
            for k in range(4):
                a(f"v_cvt_f32_i32 {vr(x+k)}, {vr(x+k)}")
            a(f"v_pk_fma_f32 {vr(x,2)}, {vr(x,2)}, {vr(KF,2)}, {vr(KF+4,2)}")
            a(f"v_pk_fma_f32 {vr(x+2,2)}, {vr(x+2,2)}, {vr(KF+2,2)}, {vr(KF+6,2)}")
            a(f"v_cvt_pk_bf16_f32 {vr(x)}, {vr(x)}, {vr(x+1)}")
            a(f"v_cvt_pk_bf16_f32 {vr(x+1)}, {vr(x+2)}, {vr(x+3)}")
            a(f"ds_write_b64 {vr(vW)}, {vr(x,2)} offset:{n*2*RS}")
            if (n + 1) % U == 0 and n < 7:
                issue(u0 + n // U + R)
        for m in range(4):
            a(f"ds_read_b128 {vr(T+4*m,4)}, {vr(vR)} offset:{m*64}")
        extra = 0
        if (c & 1) and c < NC - 1:
            read_ks(c + 1); extra = 2
        if c == NC - 1:
            read_sz(0); extra = 4 if o.ilv else 2
        issue(u0 + upc - 1 + R)
        if c == o.nat:
            nonce_atomic()
        for m in range(4):
            a(f"s_waitcnt lgkmcnt({3-m+extra})")
            cc = "0" if m == 0 else vr(S + 4*c, 4)
            a(f"v_mfma_f32_16x16x32_bf16 {vr(S+4*c,4)}, {vr(T+4*m,4)}, {vr(Q+4*m,4)}, {cc}")
    a.mute = ()
    a("s_waitcnt lgkmcnt(0)")
    stamp()
    s0 = S + 4*(NC-2)
    a(f"v_max3_f32 {vr(mx0)}, {vr(mx0)}, {vr(s0)}, {vr(s0+1)}")
    a(f"v_max3_f32 {vr(mx1)}, {vr(mx1)}, {vr(s0+2)}, {vr(s0+3)}")
    eLane, eW, eR, eG, eZ, eML, eH, vMx = KF, KF+1, KF+2, KF+3, KF+4, KF+5, KF+6, KF+7
    a(f"v_mbcnt_lo_u32_b32 {vr(eLane)}, -1, 0")
    a(f"v_mbcnt_hi_u32_b32 {vr(eLane)}, -1, {vr(eLane)}")
    a(f"v_and_b32 {vr(eH)}, 7, {vr(eLane)}")
    a(f"v_mul_u32_u24 {vr(eW)}, {HS}, {vr(eH)}")
    a(f"v_bfe_u32 {vr(eR)}, {vr(eLane)}, 3, 1")
    a(f"v_lshl_add_u32 {vr(eW)}, {vr(eR)}, 8, {vr(eW)}")
    a(f"v_lshrrev_b32 {vr(eR)}, 4, {vr(eLane)}")
    a(f"v_lshl_add_u32 {vr(eW)}, {vr(eR)}, 6, {vr(eW)}")
    s0 = S + 4*(NC-1)
    a(f"v_max3_f32 {vr(mx0)}, {vr(mx0)}, {vr(s0)}, {vr(s0+1)}")
    a(f"v_max3_f32 {vr(mx1)}, {vr(mx1)}, {vr(s0+2)}, {vr(s0+3)}")
    def xlane(op, x0, x1):
        a(f"v_mov_b32 {vr(x1)}, {vr(x0)}")
        a("s_nop 1")
        a(f"v_permlane32_swap_b32 {vr(x0)}, {vr(x1)}")
        a("s_nop 1")
        a(f"{op} {vr(x0)}, {vr(x0)}, {vr(x1)}")
        a(f"v_mov_b32 {vr(x1)}, {vr(x0)}")
        a("s_nop 1")
        a(f"v_permlane16_swap_b32 {vr(x0)}, {vr(x1)}")
        a("s_nop 1")
        a(f"{op} {vr(x0)}, {vr(x0)}, {vr(x1)}")
    a(f"v_max_f32 {vr(mx0)}, {vr(mx0)}, {vr(mx1)}")
    xlane("v_max_f32", mx0, mx1)
    a(f"v_mul_f32 {vr(vMx)}, {sr(sC1)}, {vr(mx0)}")

    def make_p(c):
        s0 = S + 4*c
        z = SZ + 4 * (c & 1)
        p = PP + 2 * (c & 1)
        for r in range(4):
            a(f"v_fma_f32 {vr(s0+r)}, {vr(s0+r)}, {sr(sC1)}, -{vr(vMx)}")
        for r in range(4):
            a(f"v_exp_f32 {vr(s0+r)}, {vr(s0+r)}")
        a("s_waitcnt lgkmcnt(0)")
        a(f"v_lshlrev_b32 {vr(KR)}, 16, {vr(z)}")
        a(f"v_and_b32 {vr(KR+1)}, {sr(sHi)}, {vr(z)}")
        a(f"v_lshlrev_b32 {vr(KR+2)}, 16, {vr(z+1)}")
        a(f"v_and_b32 {vr(KR+3)}, {sr(sHi)}, {vr(z+1)}")
        if c + 1 < NC:
            read_sz(c + 1)
        a(f"v_add_f32 {vr(mx0)}, {vr(s0)}, {vr(s0+1)}")
        a(f"v_add_f32 {vr(mx1)}, {vr(s0+2)}, {vr(s0+3)}")
        for r in range(4):
            a(f"v_mul_f32 {vr(s0+r)}, {vr(s0+r)}, {vr(KR+r)}")
        if c == 0:
            a(f"v_add_f32 {vr(vL)}, {vr(mx0)}, {vr(mx1)}")
        else:
            a(f"v_add_f32 {vr(mx0)}, {vr(mx0)}, {vr(mx1)}")
        for r in range(4):
            a(f"v_and_b32 {vr(KR+r)}, {vr(vM)}, {vr(s0+r)}")
        if c > 0:
            a(f"v_add_f32 {vr(vL)}, {vr(vL)}, {vr(mx0)}")
        for r in range(4):
            a(f"v_sub_f32 {vr(s0+r)}, {vr(s0+r)}, {vr(KR+r)}")
        a(f"v_perm_b32 {vr(p)}, {vr(s0+1)}, {vr(s0)}, {sr(sPerm)}")
        a(f"v_perm_b32 {vr(p+1)}, {vr(s0+3)}, {vr(s0+2)}, {sr(sPerm)}")
        a("s_nop 1")
        cc = "0" if c == 0 else vr(CZ, 4)
        a(f"v_mfma_f32_16x16x16_bf16 {vr(CZ,4)}, {vr(z+2,2)}, {vr(p,2)}, {cc}")
    make_p(0)
    stamp()

    def late_setup():
        a.comment("late setup")
        a(f"s_mul_i32 {sr(sT1)}, s3, {WREG}")
        a(f"v_add_u32 {vr(eW)}, {sr(sT1)}, {vr(eW)}")
        a(f"v_lshrrev_b32 {vr(T)}, 5, {vr(eLane)}")
        a(f"s_lshl_b32 {sr(sT1)}, s3, 1")
        a(f"v_add_u32 {vr(T)}, {sr(sT1)}, {vr(T)}")
        a(f"v_mul_u32_u24 {vr(eR)}, {HS}, {vr(T)}")
        a(f"v_add_u32 {vr(eR)}, {vr(vS8)}, {vr(eR)}")
        a(f"v_lshlrev_b32 {vr(eML)}, 4, {vr(T)}")
        a(f"v_lshlrev_b32 {vr(eG)}, 10, {vr(T)}")
        a(f"v_lshl_add_u32 {vr(eG)}, {vr(vS8)}, 1, {vr(eG)}")
        a(f"s_lshl_b32 s22, s2, 13")
        a("s_cmp_lg_u32 s3, 3")
        a("s_cbranch_scc1 L_no_nonce2")
        a(f"v_readfirstlane_b32 {sr(sT1)}, {vr(NV)}")
        a("s_nop 3")
        a(f"s_cmp_eq_u32 {sr(sT1)}, 0")
        a(f"s_cselect_b32 {sr(sT1)}, {sr(sNon)}, {sr(sT1)}")
        a(f"v_mov_b32 {vr(NV)}, {sr(sT1)}")
        a(f"v_mov_b32 {vr(NV+1)}, 0")
        a(f"ds_write_b32 {vr(NV+1)}, {vr(NV)} offset:{LDS_N}")
        a.label("L_no_nonce2")
        a(f"v_lshrrev_b32 {vr(NV+2)}, 3, {vr(eLane)}")
        a(f"v_lshlrev_b32 {vr(NV+2)}, 13, {vr(NV+2)}")
        a(f"v_lshl_add_u32 {vr(NV+2)}, {vr(eH)}, 4, {vr(NV+2)}")
        a(f"v_lshlrev_b32 {vr(NV+3)}, 2, {vr(eH)}")
        a(f"v_mov_b32 {vr(NV+1)}, 0")
        a(f"v_lshlrev_b32 {vr(NV+4)}, 4, {vr(eH)}")
        a(f"s_lshl_b32 {sr(sT1)}, s3, 2")
        a(f"v_add_u32 {vr(NV+4)}, {sr(sT1)}, {vr(NV+4)}")
        a(f"ds_write_b32 {vr(NV+4)}, {vr(vMx)} offset:{LDS_M}")
        a(f"s_lshl_b32 s16, {sr(sPair)}, 18")
        a(f"s_lshl_b32 s17, {sr(sWgp)}, 9")
        a("s_add_u32 s16, s16, s17")
        a("s_lshl_b32 s17, s3, 7")
        a("s_add_u32 s16, s16, s17")
        a("s_add_u32 s17, s16, 0x10000")
        a("s_add_u32 s18, s16, 0x20000")
        a("s_add_u32 s19, s16, 0x30000")
        a(f"s_lshl_b32 s20, {sr(sPair)}, 11")
        a(f"s_lshl_b32 s21, {sr(sWgp)}, 7")
        a("s_add_u32 s20, s20, s21")
        a("s_lshl_b32 s21, s3, 5")
        a("s_add_u32 s20, s20, s21")
        a("s_mov_b32 s21, 0x40000")
        if o.own:
            a(f"s_and_b32 {sr(sT1)}, {sr(sWgp)}, 7")
            a(f"s_lshl_b32 {sr(sT1)}, {sr(sT1)}, 3")
            a(f"s_mov_b64 s[28:29], 0xff")
            a(f"s_lshl_b64 s[28:29], s[28:29], {sr(sT1)}")
            a(f"s_cmp_lt_u32 {sr(sWgp)}, 8")
            a("s_cselect_b64 s[24:25], s[28:29], 0")
            a("s_cselect_b64 s[26:27], 0, s[28:29]")
            a(f"s_lshl_b32 {sr(sT1)}, {sr(sWgp)}, 9")
            a(f"s_lshl_b32 {sr(sT2)}, s3, 7")
            a(f"s_add_u32 {sr(sT1)}, {sr(sT1)}, {sr(sT2)}")
            a(f"s_and_b32 {sr(sT1)}, {sr(sT1)}, 0x1fff")
            a(f"v_lshlrev_b32 {vr(NV+5)}, 4, {vr(eH)}")
            a(f"v_add_u32 {vr(NV+5)}, {sr(sT1)}, {vr(NV+5)}")

    vu0 = NC * upc
    for c in range(NC):
        u0 = vu0 + c * upc
        p = PP + 2 * (c & 1)
        a.mute = MK[o.mutev]
        if c + 1 < NC:
            make_p(c + 1)
        if c == 1:
            a.mute = ()
            late_setup()
            a.mute = MK[o.mutev]
        if c == o.warm:
            a("s_mov_b64 exec, 1")
            a.vmem(f"buffer_load_dword {vr(NV+6)}, {vr(NV+1)}, {sr(sWS,4)}, s22 offen {o.ldf}", "warm")
            a.vmem(f"buffer_load_dword {vr(NV+7)}, {vr(NV+1)}, {sr(sOUT,4)}, 0 offen {o.ldf}", "warm")
            a("s_mov_b64 exec, -1")
        last = c == NC - 1
        E = S
        if last:
            a(f"v_mov_b32 {vr(mx0)}, {vr(vL)}")
            xlane("v_add_f32", mx0, mx1)
            a(f"ds_write_b32 {vr(NV+4)}, {vr(mx0)} offset:{LDS_L}")
            for x in range(32):
                a(f"v_sub_f32 {vr(O+x)}, {vr(O+x)}, {vr(CZ)}")
        for half in range(2):
            nn = half * 4 + 3
            rr = [reg(u0, half * 4 + e) for e in range(4)]
            if last:
                for e in range(4):
                    n2 = half * 4 + e
                    a.wait_vm({(u0 + n2 // U, n2 % U)})
                    for k in range(4):
                        a(f"v_cvt_f32_i32 {vr(rr[e]+k)}, {vr(rr[e]+k)}")
                    if e & 1:
                        for cc in range(4):
                            t = T + 8*half + 2*cc + (e >> 1)
                            a(f"v_cvt_pk_bf16_f32 {vr(t)}, {vr(rr[e-1]+cc)}, {vr(rr[e]+cc)}")
                    if half == 1 and e == 1:
                        for cc in range(4):
                            for r in range(4):
                                a0 = O + 4*cc + r
                                a(f"v_add_f32_dpp {vr(E+4*r+cc)}, {vr(a0)}, {vr(a0)} row_ror:8 row_mask:0xf bank_mask:0x3")
            else:
                a.wait_vm({(u0 + nn // U, nn % U)})
                for e in range(4):
                    for k in range(4):
                        a(f"v_cvt_f32_i32 {vr(rr[e]+k)}, {vr(rr[e]+k)}")
                for cc in range(4):
                    t = T + 8*half + 2*cc
                    a(f"v_cvt_pk_bf16_f32 {vr(t)}, {vr(rr[0]+cc)}, {vr(rr[1]+cc)}")
                    a(f"v_cvt_pk_bf16_f32 {vr(t+1)}, {vr(rr[2]+cc)}, {vr(rr[3]+cc)}")
            if U == 4 or half == 1:
                issue(u0 + nn // U + R)
            for cc in range(4):
                t = T + 8*half + 2*cc
                acc = O + 16*half + 4*cc
                cin = "0" if c == 0 else vr(acc, 4)
                a(f"v_mfma_f32_16x16x16_bf16 {vr(acc,4)}, {vr(t,2)}, {vr(p,2)}, {cin}")
    a.mute = ()
    stamp()

    a("s_nop 4")
    for cc in range(4):
        for r in range(4):
            a1 = O + 16 + 4*cc + r
            a(f"v_add_f32_dpp {vr(E+4*r+cc)}, {vr(a1)}, {vr(a1)} row_ror:8 row_mask:0xf bank_mask:0xc")
            if cc == 3:
                a(f"ds_write_b128 {vr(eW)}, {vr(E+4*r,4)} offset:{16*r}")
    a("s_waitcnt lgkmcnt(0)")
    a("s_barrier")
    F = 0
    Mr, Lr = F + 16, F + 20
    P = 48
    def poll_issue():
        for n in range(4):
            if o.own and n < 2:
                a(f"s_not_b64 exec, s[{24+2*n}:{25+2*n}]")
            if o.own and n == 2:
                a("s_mov_b64 exec, -1")
            a(f"buffer_load_dwordx4 {vr(P+4*n,4)}, {vr(NV+2)}, {sr(sWS,4)}, s{16+n} offen {o.ldf}")
    a(f"ds_read_b128 {vr(Mr,4)}, {vr(eML)} offset:{LDS_M}")
    a(f"ds_read_b128 {vr(Lr,4)}, {vr(eML)} offset:{LDS_L}")
    for w in range(4):
        a(f"ds_read_b64 {vr(F+4*w,2)}, {vr(eR)} offset:{w*WREG}")
        a(f"ds_read_b64 {vr(F+4*w+2,2)}, {vr(eR)} offset:{w*WREG+256}")
    a(f"ds_read_b32 {vr(NV)}, {vr(NV+1)} offset:{LDS_N}")
    if o.own == 1:
        a(f"s_cmp_lt_u32 {sr(sWgp)}, 16")
        a("s_cbranch_scc0 L_no_prepoll")
        poll_issue()
        a.label("L_no_prepoll")
    a("s_waitcnt lgkmcnt(10)")
    G = F + 24
    a(f"v_max3_f32 {vr(G)}, {vr(Mr)}, {vr(Mr+1)}, {vr(Mr+2)}")
    a(f"v_max_f32 {vr(G)}, {vr(G)}, {vr(Mr+3)}")
    for w in range(4):
        a(f"v_sub_f32 {vr(Mr+w)}, {vr(Mr+w)}, {vr(G)}")
    for w in range(4):
        a(f"v_exp_f32 {vr(Mr+w)}, {vr(Mr+w)}")
    a("s_waitcnt lgkmcnt(9)")
    a(f"v_mul_f32 {vr(G+1)}, {vr(Mr)}, {vr(Lr)}")
    for w in range(1, 4):
        a(f"v_fmac_f32 {vr(G+1)}, {vr(Mr+w)}, {vr(Lr+w)}")
    a(f"v_rcp_f32 {vr(G+2)}, {vr(G+1)}")
    a(f"v_log_f32 {vr(G+3)}, {vr(G+1)}")
    a("s_nop 0")
    for w in range(4):
        a(f"v_mul_f32 {vr(Mr+w)}, {vr(Mr+w)}, {vr(G+2)}")
    O1, O2 = 32, 36
    a(f"v_add_f32 {vr(O1+2)}, {vr(G)}, {vr(G+3)}")
    a(f"v_add_f32 {vr(O2+2)}, {vr(G)}, {vr(G+3)}")
    a("s_waitcnt lgkmcnt(0)")
    dst = [O1, O1+1, O2, O2+1]
    for k in range(4):
        a(f"v_mul_f32 {vr(dst[k])}, {vr(Mr)}, {vr(F+k)}")
    for w in range(1, 4):
        for k in range(4):
            a(f"v_fmac_f32 {vr(dst[k])}, {vr(Mr+w)}, {vr(F+4*w+k)}")
    a(f"v_mov_b32 {vr(O1+3)}, {vr(NV)}")
    a(f"v_mov_b32 {vr(O2+3)}, {vr(NV)}")
    a(f"s_cmp_lt_u32 {sr(sWgp)}, {0 if o.nopoll else 16}")
    if o.nopoll == 2:
        a.mute = ("buffer_store",)
    a(f"buffer_store_dwordx4 {vr(O1,4)}, {vr(eG)}, {sr(sWS,4)}, s22 offen {o.stf}")
    a(f"buffer_store_dwordx4 {vr(O2,4)}, {vr(eG)}, {sr(sWS,4)}, s22 offen offset:512 {o.stf}")
    a.mute = ()
    if o.stamp == 2:
        a("s_memrealtime s[82:83]")
        a("s_memrealtime s[80:81]")
    a("s_cbranch_scc0 L_fin_done")
    if o.own:
        if o.own == 2:
            poll_issue()
        a(f"ds_write_b128 {vr(eG)}, {vr(O1,4)} offset:{LDS_S}")
        a(f"ds_write_b128 {vr(eG)}, {vr(O2,4)} offset:{LDS_S+512}")
        a("s_waitcnt lgkmcnt(0)")
        a("s_barrier")
        a("s_mov_b64 exec, s[24:25]")
        a(f"ds_read_b128 {vr(P,4)}, {vr(NV+5)} offset:{LDS_S}")
        a("s_mov_b64 exec, s[26:27]")
        a(f"ds_read_b128 {vr(P+4,4)}, {vr(NV+5)} offset:{LDS_S}")
        a("s_mov_b64 exec, -1")
        a(f"s_waitcnt vmcnt({2 if o.own == 1 else 0}) lgkmcnt(0)")
        a("s_branch L_check")
    if o.sel:
        for n in range(4):
            a(f"s_mov_b64 s[{24+2*n}:{25+2*n}], -1")
        a.label("L_poll")
        for n in range(4):
            a(f"s_mov_b64 exec, s[{24+2*n}:{25+2*n}]")
            a(f"s_cbranch_execz L_skip{n}")
            a(f"buffer_load_dwordx4 {vr(P+4*n,4)}, {vr(NV+2)}, {sr(sWS,4)}, s{16+n} offen {o.ldf}")
            a.label(f"L_skip{n}")
        a("s_mov_b64 exec, -1")
        a("s_sub_u32 s21, s21, 1")
        a("s_cbranch_scc1 L_fin_done")
        a("s_waitcnt vmcnt(0)")
        for n in range(4):
            a(f"v_xor_b32 {vr(P+16+n)}, {vr(P+4*n+3)}, {vr(NV)}")
            a(f"v_xor_b32_dpp {vr(P+20+n)}, {vr(P+4*n+2)}, {vr(P+4*n+2)} quad_perm:[1,0,3,2] {DPP}")
        for n in range(4):
            a(f"v_or_b32 {vr(P+16+n)}, {vr(P+16+n)}, {vr(P+20+n)}")
        for n in range(4):
            a(f"v_cmp_ne_u32 s[{24+2*n}:{25+2*n}], 0, {vr(P+16+n)}")
        a(f"v_max3_f32 {vr(P+24)}, {vr(P+2)}, {vr(P+6)}, {vr(P+10)}")
        a(f"v_max_f32 {vr(P+24)}, {vr(P+24)}, {vr(P+14)}")
        a("s_or_b64 s[32:33], s[24:25], s[26:27]")
        a("s_or_b64 s[34:35], s[28:29], s[30:31]")
        a("s_or_b64 s[32:33], s[32:33], s[34:35]")
        a("s_cbranch_scc1 L_poll")
    else:
        a.label("L_poll")
        poll_issue()
        a("s_sub_u32 s21, s21, 1")
        a("s_cbranch_scc1 L_fin_done")
        if o.own:
            a("s_waitcnt vmcnt(0)")
            a.label("L_check")
        for n in range(4):
            if not o.own:
                a(f"s_waitcnt vmcnt({3-n})")
            a(f"v_xor_b32 {vr(P+16+n)}, {vr(P+4*n+3)}, {vr(NV)}")
            a(f"v_xor_b32_dpp {vr(P+20+n)}, {vr(P+4*n+2)}, {vr(P+4*n+2)} quad_perm:[1,0,3,2] {DPP}")
        a(f"v_or3_b32 {vr(P+16)}, {vr(P+16)}, {vr(P+17)}, {vr(P+18)}")
        a(f"v_or3_b32 {vr(P+20)}, {vr(P+20)}, {vr(P+21)}, {vr(P+22)}")
        a(f"v_or3_b32 {vr(P+16)}, {vr(P+16)}, {vr(P+19)}, {vr(P+23)}")
        a(f"v_or_b32 {vr(P+16)}, {vr(P+16)}, {vr(P+20)}")
        a(f"v_cmp_ne_u32 vcc, 0, {vr(P+16)}")
        a(f"v_max3_f32 {vr(P+24)}, {vr(P+2)}, {vr(P+6)}, {vr(P+10)}")
        a(f"v_max_f32 {vr(P+24)}, {vr(P+24)}, {vr(P+14)}")
        if o.sleep:
            a("s_cbranch_vccz L_poll_ok")
            a(f"s_sleep {o.sleep}")
            a("s_branch L_poll")
            a.label("L_poll_ok")
        else:
            a("s_cbranch_vccnz L_poll")
    if o.stamp == 2:
        a("s_memrealtime s[80:81]")
    def xl3(op, xs, ts):
        a("s_nop 1")
        for x in xs:
            a(f"{op}_dpp {vr(x)}, {vr(x)}, {vr(x)} row_ror:8 {DPP}")
        for sw in ("v_permlane16_swap_b32", "v_permlane32_swap_b32"):
            for x, t in zip(xs, ts):
                a(f"v_mov_b32 {vr(t)}, {vr(x)}")
            a("s_nop 1")
            for x, t in zip(xs, ts):
                a(f"{sw} {vr(x)}, {vr(t)}")
            a("s_nop 1")
            for x, t in zip(xs, ts):
                a(f"{op} {vr(x)}, {vr(x)}, {vr(t)}")
    xl3("v_max_f32", [P+24], [P+25])
    for n in range(4):
        a(f"v_sub_f32 {vr(P+4*n+2)}, {vr(P+4*n+2)}, {vr(P+24)}")
    for n in range(4):
        a(f"v_exp_f32 {vr(P+4*n+2)}, {vr(P+4*n+2)}")
    W, A0, A1 = P+26, P+27, P+28
    a(f"v_add_f32 {vr(W)}, {vr(P+2)}, {vr(P+6)}")
    a(f"v_mul_f32 {vr(A0)}, {vr(P+2)}, {vr(P)}")
    a(f"v_mul_f32 {vr(A1)}, {vr(P+2)}, {vr(P+1)}")
    a(f"v_add_f32 {vr(W)}, {vr(W)}, {vr(P+10)}")
    for n in range(1, 4):
        a(f"v_fmac_f32 {vr(A0)}, {vr(P+4*n+2)}, {vr(P+4*n)}")
        a(f"v_fmac_f32 {vr(A1)}, {vr(P+4*n+2)}, {vr(P+4*n+1)}")
    a(f"v_add_f32 {vr(W)}, {vr(W)}, {vr(P+14)}")
    xl3("v_add_f32", [W, A0, A1], [P+29, P+30, P+31])
    a(f"v_rcp_f32 {vr(W)}, {vr(W)}")
    a("s_mov_b64 exec, 0xff")
    a(f"v_mul_f32 {vr(A0)}, {vr(A0)}, {vr(W)}")
    a(f"v_mul_f32 {vr(A1)}, {vr(A1)}, {vr(W)}")
    a(f"v_cvt_pk_bf16_f32 {vr(A0)}, {vr(A0)}, {vr(A1)}")
    a(f"buffer_store_dword {vr(A0)}, {vr(NV+3)}, {sr(sOUT,4)}, s20 offen")
    a("s_mov_b64 exec, -1")
    a.label("L_fin_done")
    if o.stamp:
        stamp()
        a("s_waitcnt lgkmcnt(0)")
        a("s_getreg_b32 s5, hwreg(HW_REG_XCC_ID)")
        a("s_lshl_b32 s4, s2, 2")
        a("s_add_u32 s4, s4, s3")
        a("s_lshl_b32 s4, s4, 6")
        a("s_add_u32 s4, s4, 0x4000000")
        a("s_nop 1")
        for i in range(8):
            a(f"v_mov_b32 v{i}, s{72+2*i}")
        a("v_mov_b32 v8, s5")
        a("v_mov_b32 v9, s21")
        a("v_mov_b32 v12, 0")
        a("s_mov_b64 exec, 1")
        a(f"buffer_store_dwordx4 v[0:3], v12, {sr(sWS,4)}, s4 offen")
        a(f"buffer_store_dwordx4 v[4:7], v12, {sr(sWS,4)}, s4 offen offset:16")
        a(f"buffer_store_dwordx2 v[8:9], v12, {sr(sWS,4)}, s4 offen offset:32")
    a.label("L_main_end")
    a("s_endpgm")
    lds = LDS_N + 16
    return a.text(), nvgpr, lds

def main():
    ap = argparse.ArgumentParser()
    ap.add_argument("-o", default="/dev/stdout")
    ap.add_argument("--ring", type=int, default=3)
    ap.add_argument("--unit", type=int, default=8)
    ap.add_argument("--stamp", type=int, default=0)
    ap.add_argument("--ksub", type=int, default=4)
    ap.add_argument("--kfirst", type=int, default=1)
    ap.add_argument("--nat", type=int, default=-1)
    ap.add_argument("--pre", type=int, default=99)
    ap.add_argument("--thr", type=int, default=-1)
    ap.add_argument("--own", type=int, default=0)
    ap.add_argument("--tlb", type=int, default=0)
    ap.add_argument("--bar", type=int, default=0)
    ap.add_argument("--bar1", type=int, default=99)
    ap.add_argument("--smnt", type=int, default=0)
    ap.add_argument("--nopoll", type=int, default=0)
    ap.add_argument("--nodma", type=int, default=0)
    ap.add_argument("--mutek", type=int, default=0)
    ap.add_argument("--mutev", type=int, default=0)
    ap.add_argument("--vco", type=int, default=0)
    ap.add_argument("--cpf", type=int, default=0)
    ap.add_argument("--cpm", type=int, default=32)
    ap.add_argument("--start", type=int, default=0)
    ap.add_argument("--ilv", type=int, default=0)
    ap.add_argument("--sel", type=int, default=0)
    ap.add_argument("--warm", type=int, default=-1)
    ap.add_argument("--stf", default="sc1")
    ap.add_argument("--ldf", default="sc1")
    ap.add_argument("--sleep", type=int, default=0)
    ap.add_argument("--thr0", type=int, default=2)
    ap.add_argument("--thr1", type=int, default=99)
    ap.add_argument("--thrall", type=int, default=0)
    ap.add_argument("--thro", type=int, default=-1)
    ap.add_argument("--thrm", type=int, default=1)
    ap.add_argument("--ldspad", type=int, default=81920)
    o = ap.parse_args()
    k1 = NAME + "_kernel"
    body1, nv1, lds1 = gen_main(o, k1)
    s = HEADER
    s += f"; @launch grid=(256,1,1) block=(256,1,1) lds={lds1}\n"
    s += '.amdgcn_target "amdgcn-amd-amdhsa--gfx950"\n.text\n'
    s += f".globl {k1}\n.p2align 8\n.type {k1},@function\n{body1}"
    s += '.section .rodata,"a"\n.p2align 6\n'
    s += kd(k1, 264, 96)
    open(o.o, "w").write(s)

if __name__ == "__main__":
    main()
```

```python
import sys, math, struct, argparse
from gen import HEADER, NAME, Asm, vr, sr, f32bits, kd

DPP = "row_mask:0xf bank_mask:0xf"
NC = 16
DOC = """;
;  * waves merge through LDS (exact max/sum rescale); each workgroup publishes {o0,o1,lse,tag} granules to d_ws (sc1);
"""

def gen_main(o, kname):
    R = o.ring
    U = o.unit
    nt = " nt"
    a = Asm()
    Q, OX, S, CZ, T, KF, KR = 0, 16, 32, 96, 100, 116, 124
    O = 0
    vKa, vKb, vV, vW, vR, vM, vS8, vG8 = 128, 129, 130, 131, 132, 133, 134, 135
    NV = 136
    PP = 144
    SZ = 148
    RB = 160
    mx0, mx1, vL, vV2 = 156, 157, 158, 159
    nvgpr = RB + 4 * U * R
    assert nvgpr <= 256, nvgpr
    sK, sV, sQ, sSM, sWS, sDBG, sOUT = 36, 40, 44, 48, 52, 56, 60
    sA = 4
    sB0, sB1 = 5, 6
    sPerm, sC1, sHi, sPair = 12, 13, 14, 15
    sT1, sT2, sT3, sWgp = 64, 65, 66, 67
    sMask = 68
    sNon = 70
    c1 = (128.0 ** -0.5) * math.log2(math.e)
    RS = 288
    WREG = 16 * RS
    LDS_S = 4 * WREG
    LDS_Q = LDS_S + 8192
    LDS_M = LDS_Q + 2048
    LDS_L = LDS_M + 128
    LDS_N = LDS_L + 128
    HS = 528
    def coff(c):
        return ((c & 3) << 15) | ((c >> 2) << 22)

    nst = [0]
    def stamp():
        if o.stamp:
            a(f"s_memrealtime s[{72+2*nst[0]}:{73+2*nst[0]}]")
            nst[0] += 1
    def srd_tail(d, size):
        a(f"s_mov_b32 {sr(d+2)}, 0x{size:x}")
        a(f"s_mov_b32 {sr(d+3)}, 0x20000")

    a.label(kname)
    a("s_cmp_ge_u32 s2, 256")
    a("s_cbranch_scc1 L_main_end")
    stamp()
    a(f"v_lshrrev_b32 v1, 6, v0")
    a(f"s_load_dwordx2 {sr(sK,2)}, s[0:1], 8")
    a(f"v_readfirstlane_b32 s3, v1")
    a(f"s_load_dwordx2 {sr(sQ,2)}, s[0:1], 0")
    a(f"s_load_dwordx2 {sr(sDBG,2)}, s[0:1], 64")
    a(f"v_and_b32 v2, 63, v0")
    a(f"s_lshl_b32 {sr(sT2)}, s3, 3")
    a(f"s_add_u32 {sr(sT2)}, {sr(sT2)}, 24")
    a(f"s_load_dwordx2 {sr(sSM,2)}, s[0:1], {sr(sT2)}")
    a(f"s_memrealtime {sr(sNon,2)}")
    if o.tlb:
        a(f"s_load_dwordx2 {sr(sV,2)}, s[0:1], 16")
        a(f"s_load_dwordx2 {sr(sWS,2)}, s[0:1], 72")
        a(f"s_load_dwordx2 {sr(sOUT,2)}, s[0:1], 56")
        srd_tail(sV, 0x8000000)
        srd_tail(sWS, 0x20000000)
        srd_tail(sOUT, 16384)
    a(f"v_lshlrev_b32 {vr(vKa)}, 4, v2")
    a(f"v_add_u32 {vr(vKb)}, 0x1000, {vr(vKa)}")
    srd_tail(sK, 0x8000000)
    srd_tail(sSM, 524288)
    srd_tail(sQ, 16384)
    srd_tail(sDBG, 256)
    if o.thr >= 0 and not o.thrall:
        a("s_getreg_b32 s23, hwreg(HW_REG_XCC_ID)")
    a(f"s_lshr_b32 {sr(sPair)}, s2, 5")
    a(f"s_and_b32 {sr(sWgp)}, s2, 31")
    a(f"s_lshl_b32 {sr(sA)}, {sr(sPair)}, 24")
    a(f"s_lshl_b32 {sr(sT2)}, {sr(sWgp)}, 17")
    a(f"s_or_b32 {sr(sA)}, {sr(sA)}, {sr(sT2)}")
    a(f"s_lshr_b32 {sr(sT3)}, {sr(sA)}, 8")
    a(f"s_lshl_b32 {sr(sT2)}, s3, {10 if o.ilv else 13}")
    a(f"s_or_b32 {sr(sA)}, {sr(sA)}, {sr(sT2)}")
    a(f"v_and_b32 v3, 31, v2")
    a(f"v_lshrrev_b32 v7, 5, v2")
    a(f"v_lshlrev_b32 v6, 14, v7")
    a(f"v_lshl_add_u32 {vr(T)}, v3, 4, v6")
    a(f"v_mov_b32 {vr(NV+1)}, 0")
    a(f"v_mov_b32 {vr(NV+2)}, 0")
    a(f"s_lshl_b32 {sr(sT1)}, s3, 11")
    a(f"s_add_u32 m0, {sr(sT1)}, {LDS_S}")
    a("s_waitcnt lgkmcnt(0)")
    stamp()

    upc = 8 // U
    units = [("K", c, h) for c in range(NC) for h in range(upc)] + [("V", c, h) for c in range(NC) for h in range(upc)]
    def ubuf(ui):
        return RB + 4 * U * (ui % R)
    def issue(ui):
        if ui >= len(units):
            return
        kind, c, h = units[ui]
        b = ubuf(ui)
        if not (o.ilv and kind == "K"):
            if c == 0:
                sb = sA
            else:
                sb = sB0 if (ui & 1) == 0 else sB1
                a(f"s_add_u32 {sr(sb)}, {sr(sA)}, 0x{coff(c):x}")
        if o.thr >= 0 and o.thr0 <= ui < o.thr1:
            if o.thrall:
                a(f"s_waitcnt vmcnt({o.thr})")
                if o.bar and ui % o.bar == 0 and ui < o.bar1:
                    a("s_barrier")
            elif o.thro >= 0:
                a(f"s_waitcnt vmcnt({o.thro})")
                if ui % o.thrm == 0:
                    a("s_bitcmp1_b32 s23, 0")
                    a(f"s_cbranch_scc1 L_thr{ui}")
                    a(f"s_waitcnt vmcnt({o.thr})")
                    a.label(f"L_thr{ui}")
            else:
                a("s_bitcmp1_b32 s23, 0")
                a(f"s_cbranch_scc1 L_thr{ui}")
                a(f"s_waitcnt vmcnt({o.thr})")
                a.label(f"L_thr{ui}")
        if o.ilv and kind == "K":
            for i in range(U):
                n = h * U + i
                off = coff(c) + (n >> 1) * 8192
                if (n & 1) == 0:
                    if off == 0:
                        sb = sA
                    else:
                        sb = sB0 if ((n >> 1) & 1) == 0 else sB1
                        a(f"s_add_u32 {sr(sb)}, {sr(sA)}, 0x{off:x}")
                va = vKa if (n & 1) == 0 else vKb
                a.vmem(f"buffer_load_dwordx4 {vr(b + 4*i, 4)}, {vr(va)}, {sr(sK,4)}, {sr(sb)} offen{nt}", (ui, i))
            return
        for i in range(U):
            n = h * U + i
            if kind == "K":
                va = vKa if n < 4 else vKb
                a.vmem(f"buffer_load_dwordx4 {vr(b + 4*i, 4)}, {vr(va)}, {sr(sK,4)}, {sr(sb)} offen offset:{(n&3)*1024}{nt}", (ui, i))
            elif o.ilv:
                half, e = n >> 2, n & 3
                va = vV if e < 2 else vV2
                a.vmem(f"buffer_load_dwordx4 {vr(b + 4*i, 4)}, {vr(va)}, {sr(sV,4)}, {sr(sb)} offen offset:{(e&1)*512+half*256}{nt}", (ui, i))
            elif o.vco:
                va = vKa if n < 4 else vKb
                a.vmem(f"buffer_load_dwordx4 {vr(b + 4*i, 4)}, {vr(va)}, {sr(sV,4)}, {sr(sb)} offen offset:{(n&3)*1024}{nt}", (ui, i))
            else:
                half, e = n >> 2, n & 3
                a.vmem(f"buffer_load_dwordx4 {vr(b + 4*i, 4)}, {vr(vV)}, {sr(sV,4)}, {sr(sb)} offen offset:{e*512+half*256}{nt}", (ui, i))
    def reg(kind_base_ui, n):
        return ubuf(kind_base_ui + n // U) + 4 * (n % U)

    def nonce_atomic():
        a(f"s_lshl_b32 {sr(sT1)}, {sr(sPair)}, 5")
        a("s_cmp_lg_u32 s3, 3")
        a("s_cbranch_scc1 L_no_nonce")
        a(f"s_or_b32 {sr(sNon)}, {sr(sNon)}, 1")
        a(f"v_mov_b32 {vr(NV)}, {sr(sNon)}")
        a("s_mov_b64 exec, 1")
        a(f"buffer_atomic_cmpswap {vr(NV,2)}, {vr(NV+2)}, {sr(sDBG,4)}, {sr(sT1)} offen sc0")
        a("s_mov_b64 exec, -1")
        a.label("L_no_nonce")
    if o.nodma:
        _vm = a.vmem
        def vm2(t, tag):
            if tag == "sm" and (o.nodma & 1):
                return
            _vm(t, tag)
        a.vmem = vm2
        if o.nodma & 2:
            a.mute = ("buffer_atomic",)
    if o.start:
        if o.start == 2:
            nonce_atomic()
        issue(0); issue(1)
        if o.start == 1:
            nonce_atomic()
    else:
        if o.nat < 0:
            nonce_atomic()
        if o.kfirst:
            issue(0)
    a.vmem(f"buffer_load_dwordx4 {vr(T)}, {sr(sSM,4)}, {sr(sT3)} offen{' nt' if o.smnt else ''} lds", "sm")
    a(f"s_add_u32 m0, m0, 1024")
    a(f"s_add_u32 {sr(sT3)}, {sr(sT3)}, 0x8000")
    a.vmem(f"buffer_load_dwordx4 {vr(T)}, {sr(sSM,4)}, {sr(sT3)} offen{' nt' if o.smnt else ''} lds", "sm")
    a(f"s_lshl_b32 {sr(sT2)}, s3, 9")
    a(f"s_add_u32 m0, {sr(sT2)}, {LDS_Q}")
    a(f"s_lshl_b32 {sr(sT3)}, {sr(sPair)}, 11")
    a(f"s_add_u32 {sr(sT3)}, {sr(sT3)}, {sr(sT2)}")
    a("s_mov_b32 exec_hi, 0")
    a.vmem(f"buffer_load_dwordx4 {vr(vKa)}, {sr(sQ,4)}, {sr(sT3)} offen lds", "sm")
    a("s_mov_b32 exec_hi, -1")
    if o.tlb:
        a(f"s_lshl_b32 {sr(sT1)}, s3, 22")
        a(f"s_add_u32 {sr(sT1)}, {sr(sT1)}, {sr(sA)}")
        a("s_mov_b64 exec, 1")
        a.vmem(f"buffer_load_dword {vr(S+56)}, {vr(vKa)}, {sr(sV,4)}, {sr(sT1)} offen nt", "tlb")
        a.vmem(f"buffer_load_dword {vr(S+57)}, {vr(vKa)}, {sr(sK,4)}, {sr(sT1)} offen nt", "tlb")
        if o.tlb >= 2:
            a.vmem(f"buffer_load_dword {vr(S+58)}, {vr(vKa)}, {sr(sWS,4)}, 0 offen", "tlb")
            a.vmem(f"buffer_load_dword {vr(S+59)}, {vr(vKa)}, {sr(sOUT,4)}, 0 offen", "tlb")
        a("s_mov_b64 exec, -1")
    if o.cpf:
        a("s_getpc_b64 s[24:25]")
        a.label("L_pc")
        a(f"s_sub_u32 s24, s24, L_pc-{kname}")
        a("s_subb_u32 s25, s25, 0")
        a(f"s_lshr_b32 {sr(sT1)}, s2, 3")
        a(f"s_lshl_b32 {sr(sT1)}, {sr(sT1)}, 2")
        a(f"s_add_u32 {sr(sT1)}, {sr(sT1)}, s3")
        a(f"s_and_b32 {sr(sT1)}, {sr(sT1)}, {o.cpm - 1}")
        a(f"s_mul_i32 {sr(sT1)}, {sr(sT1)}, {o.cpf * 1024}")
        a(f"s_min_u32 {sr(sT1)}, {sr(sT1)}, L_main_end-{kname}-{o.cpf*1024}")
        a(f"v_add_u32 {vr(S+60)}, {sr(sT1)}, {vr(vKa)}")
        for i in range(o.cpf):
            a.vmem(f"global_load_dwordx4 {vr(S+56,4)}, {vr(S+60)}, s[24:25] offset:{i*1024}", "cpf")
    npre = min(R, o.pre)
    if not o.start:
        for ui in range(1 if o.kfirst else 0, npre):
            issue(ui)
    if not o.tlb:
        a(f"s_load_dwordx2 {sr(sV,2)}, s[0:1], 16")
        a(f"s_load_dwordx2 {sr(sWS,2)}, s[0:1], 72")
        a(f"s_load_dwordx2 {sr(sOUT,2)}, s[0:1], 56")
    a(f"v_lshrrev_b32 v4, 4, v2")
    a(f"v_and_b32 v5, 15, v2")
    a(f"v_lshlrev_b32 v6, 4, v5")
    a(f"v_lshl_add_u32 {vr(vV)}, v4, {13 if o.ilv else 11}, v6")
    if o.ilv:
        a(f"v_add_u32 {vr(vV2)}, 0x1000, {vr(vV)}")
    a(f"v_lshlrev_b32 {vr(vS8)}, 3, v3")
    a(f"s_lshl_b32 {sr(sT1)}, s3, {2 if o.ilv else 5}")
    a(f"v_lshlrev_b32 v6, {5 if o.ilv else 3}, v4")
    a(f"v_add_u32 {vr(vG8)}, {sr(sT1)}, v6")
    a(f"v_and_b32 v9, 7, v2")
    a(f"v_lshlrev_b32 v6, 8, v9")
    a(f"v_lshl_add_u32 {vr(T+1)}, v4, 4, v6")
    a(f"s_mul_i32 {sr(sT1)}, s3, {WREG}")
    a(f"v_mul_u32_u24 v6, {RS}, v7")
    a(f"v_add3_u32 {vr(vW)}, v6, {vr(vS8)}, {sr(sT1)}")
    a(f"v_mul_u32_u24 v6, {RS}, v5")
    a(f"v_lshl_add_u32 v6, v4, 4, v6")
    a(f"v_add_u32 {vr(vR)}, {sr(sT1)}, v6")
    a(f"v_lshrrev_b32 v6, 3, v5")
    a(f"v_sub_u32 v6, 0, v6")
    a(f"v_lshlrev_b32 {vr(vM)}, 16, v6")
    srd_tail(sV, 0x8000000)
    srd_tail(sWS, 0x20000000)
    srd_tail(sOUT, 16384)
    a(f"s_mov_b32 {sr(sPerm)}, 0x07060302")
    a(f"s_mov_b32 {sr(sC1)}, 0x{f32bits(c1):08x}")
    a(f"s_mov_b32 {sr(sHi)}, 0xffff0000")
    stamp()
    if o.start:
        npre = 3
        a(f"s_waitcnt vmcnt({o.thr + 3})")
        sv = o.thr0; o.thr0 = 3
        issue(2)
        o.thr0 = sv
    if not (o.nodma & 1):
        a.wait_vm({"sm"})
    if not (o.nodma & 4):
        a("s_barrier")
    for m in range(4):
        a(f"ds_read_b128 {vr(Q+4*m,4)}, {vr(T+1)} offset:{LDS_Q + m*64}")
    def read_ks(c):
        off = (c >> 2) * 512 + ((c >> 1) & 1) * 256
        a(f"ds_read_b64 {vr(KR,2)}, {vr(vS8)} offset:{LDS_S + off}")
        a(f"ds_read_b64 {vr(KR+2,2)}, {vr(vS8)} offset:{LDS_S + 2048 + off}")
    def read_sz(c):
        off = (c >> 2) * 512 + (c & 3) * 128
        z = SZ + 4 * (c & 1)
        if o.ilv:
            a(f"ds_read_b32 {vr(z)}, {vr(vG8)} offset:{LDS_S + 4096 + off}")
            a(f"ds_read_b32 {vr(z+1)}, {vr(vG8)} offset:{LDS_S + 4096 + off + 16}")
            a(f"ds_read_b32 {vr(z+2)}, {vr(vG8)} offset:{LDS_S + 6144 + off}")
            a(f"ds_read_b32 {vr(z+3)}, {vr(vG8)} offset:{LDS_S + 6144 + off + 16}")
        else:
            a(f"ds_read_b64 {vr(z,2)}, {vr(vG8)} offset:{LDS_S + 4096 + off}")
            a(f"ds_read_b64 {vr(z+2,2)}, {vr(vG8)} offset:{LDS_S + 6144 + off}")
    read_ks(0)
    for ui in range(npre, R):
        issue(ui)

    MK = {0: (), 1: ("v_", "ds_", "s_nop", "s_waitcnt lgkm"), 2: ("ds_", "s_waitcnt lgkm"), 3: ("v_",)}
    a.mute = MK[o.mutek]
    for c in range(NC):
        u0 = c * upc
        if (c & 1) == 0:
            a("s_waitcnt lgkmcnt(0)")
            a(f"v_lshlrev_b32 {vr(KF)}, 16, {vr(KR)}")
            a(f"v_and_b32 {vr(KF+1)}, {sr(sHi)}, {vr(KR)}")
            a(f"v_lshlrev_b32 {vr(KF+2)}, 16, {vr(KR+1)}")
            a(f"v_and_b32 {vr(KF+3)}, {sr(sHi)}, {vr(KR+1)}")
            a(f"v_lshlrev_b32 {vr(KF+4)}, 16, {vr(KR+2)}")
            a(f"v_and_b32 {vr(KF+5)}, {sr(sHi)}, {vr(KR+2)}")
            a(f"v_lshlrev_b32 {vr(KF+6)}, 16, {vr(KR+3)}")
            a(f"v_and_b32 {vr(KF+7)}, {sr(sHi)}, {vr(KR+3)}")
            for k in range(4):
                a(f"v_mul_f32 {vr(KF+4+k)}, -{vr(KF+4+k)}, {vr(KF+k)}")
        if c >= 2:
            s0 = S + 4*(c-2)
            if c == 2:
                a(f"v_max_f32 {vr(mx0)}, {vr(s0)}, {vr(s0+1)}")
                a(f"v_max_f32 {vr(mx1)}, {vr(s0+2)}, {vr(s0+3)}")
            else:
                a(f"v_max3_f32 {vr(mx0)}, {vr(mx0)}, {vr(s0)}, {vr(s0+1)}")
                a(f"v_max3_f32 {vr(mx1)}, {vr(mx1)}, {vr(s0+2)}, {vr(s0+3)}")
        for n in range(8):
            if n % o.ksub == 0:
                nn = n + o.ksub - 1
                a.wait_vm({(u0 + nn // U, nn % U)})
                if c == 0 and n == 0:
                    stamp()
            x = reg(u0, n)
            for k in range(4):
                a(f"v_cvt_f32_i32 {vr(x+k)}, {vr(x+k)}")
            a(f"v_pk_fma_f32 {vr(x,2)}, {vr(x,2)}, {vr(KF,2)}, {vr(KF+4,2)}")
            a(f"v_pk_fma_f32 {vr(x+2,2)}, {vr(x+2,2)}, {vr(KF+2,2)}, {vr(KF+6,2)}")
            a(f"v_cvt_pk_bf16_f32 {vr(x)}, {vr(x)}, {vr(x+1)}")
            a(f"v_cvt_pk_bf16_f32 {vr(x+1)}, {vr(x+2)}, {vr(x+3)}")
            a(f"ds_write_b64 {vr(vW)}, {vr(x,2)} offset:{n*2*RS}")
            if (n + 1) % U == 0 and n < 7:
                issue(u0 + n // U + R)
        for m in range(4):
            a(f"ds_read_b128 {vr(T+4*m,4)}, {vr(vR)} offset:{m*64}")
        extra = 0
        if (c & 1) and c < NC - 1:
            read_ks(c + 1); extra = 2
        if c == NC - 1:
            read_sz(0); extra = 4 if o.ilv else 2
        issue(u0 + upc - 1 + R)
        if c == o.nat:
            nonce_atomic()
        for m in range(4):
            a(f"s_waitcnt lgkmcnt({3-m+extra})")
            cc = "0" if m == 0 else vr(S + 4*c, 4)
            a(f"v_mfma_f32_16x16x32_bf16 {vr(S+4*c,4)}, {vr(T+4*m,4)}, {vr(Q+4*m,4)}, {cc}")
    a.mute = ()
    if o.mutek:
        a("s_waitcnt lgkmcnt(0)")
    stamp()
    s0 = S + 4*(NC-2)
    a(f"v_max3_f32 {vr(mx0)}, {vr(mx0)}, {vr(s0)}, {vr(s0+1)}")
    a(f"v_max3_f32 {vr(mx1)}, {vr(mx1)}, {vr(s0+2)}, {vr(s0+3)}")
    eLane, eW, eR, eG, eZ, eML, eH, vMx = KF, KF+1, KF+2, KF+3, KF+4, KF+5, KF+6, KF+7
    a(f"v_mbcnt_lo_u32_b32 {vr(eLane)}, -1, 0")
    a(f"v_mbcnt_hi_u32_b32 {vr(eLane)}, -1, {vr(eLane)}")
    a(f"v_and_b32 {vr(eH)}, 7, {vr(eLane)}")
    a(f"v_mul_u32_u24 {vr(eW)}, {HS}, {vr(eH)}")
    a(f"v_bfe_u32 {vr(eR)}, {vr(eLane)}, 3, 1")
    a(f"v_lshl_add_u32 {vr(eW)}, {vr(eR)}, 8, {vr(eW)}")
    a(f"v_lshrrev_b32 {vr(eR)}, 4, {vr(eLane)}")
    a(f"v_lshl_add_u32 {vr(eW)}, {vr(eR)}, 6, {vr(eW)}")
    s0 = S + 4*(NC-1)
    a(f"v_max3_f32 {vr(mx0)}, {vr(mx0)}, {vr(s0)}, {vr(s0+1)}")
    a(f"v_max3_f32 {vr(mx1)}, {vr(mx1)}, {vr(s0+2)}, {vr(s0+3)}")
    def xlane(op, x0, x1):
        a(f"v_mov_b32 {vr(x1)}, {vr(x0)}")
        a("s_nop 1")
        a(f"v_permlane32_swap_b32 {vr(x0)}, {vr(x1)}")
        a("s_nop 1")
        a(f"{op} {vr(x0)}, {vr(x0)}, {vr(x1)}")
        a(f"v_mov_b32 {vr(x1)}, {vr(x0)}")
        a("s_nop 1")
        a(f"v_permlane16_swap_b32 {vr(x0)}, {vr(x1)}")
        a("s_nop 1")
        a(f"{op} {vr(x0)}, {vr(x0)}, {vr(x1)}")
    a(f"v_max_f32 {vr(mx0)}, {vr(mx0)}, {vr(mx1)}")
    xlane("v_max_f32", mx0, mx1)
    a(f"v_mul_f32 {vr(vMx)}, {sr(sC1)}, {vr(mx0)}")

    def make_p(c):
        s0 = S + 4*c
        z = SZ + 4 * (c & 1)
        p = s0 if o.ahead else PP + 2 * (c & 1)
        for r in range(4):
            a(f"v_fma_f32 {vr(s0+r)}, {vr(s0+r)}, {sr(sC1)}, -{vr(vMx)}")
        for r in range(4):
            a(f"v_exp_f32 {vr(s0+r)}, {vr(s0+r)}")
        a("s_waitcnt lgkmcnt(0)")
        a(f"v_lshlrev_b32 {vr(KR)}, 16, {vr(z)}")
        a(f"v_and_b32 {vr(KR+1)}, {sr(sHi)}, {vr(z)}")
        a(f"v_lshlrev_b32 {vr(KR+2)}, 16, {vr(z+1)}")
        a(f"v_and_b32 {vr(KR+3)}, {sr(sHi)}, {vr(z+1)}")
        if c + 1 < NC:
            read_sz(c + 1)
        a(f"v_add_f32 {vr(mx0)}, {vr(s0)}, {vr(s0+1)}")
        a(f"v_add_f32 {vr(mx1)}, {vr(s0+2)}, {vr(s0+3)}")
        for r in range(4):
            a(f"v_mul_f32 {vr(s0+r)}, {vr(s0+r)}, {vr(KR+r)}")
        if c == 0:
            a(f"v_add_f32 {vr(vL)}, {vr(mx0)}, {vr(mx1)}")
        else:
            a(f"v_add_f32 {vr(mx0)}, {vr(mx0)}, {vr(mx1)}")
        for r in range(4):
            a(f"v_and_b32 {vr(KR+r)}, {vr(vM)}, {vr(s0+r)}")
        if c > 0:
            a(f"v_add_f32 {vr(vL)}, {vr(vL)}, {vr(mx0)}")
        for r in range(4):
            a(f"v_sub_f32 {vr(s0+r)}, {vr(s0+r)}, {vr(KR+r)}")
        a(f"v_perm_b32 {vr(p)}, {vr(s0+1)}, {vr(s0)}, {sr(sPerm)}")
        a(f"v_perm_b32 {vr(p+1)}, {vr(s0+3)}, {vr(s0+2)}, {sr(sPerm)}")
        a("s_nop 1")
        cc = "0" if c == 0 else vr(CZ, 4)
        a(f"v_mfma_f32_16x16x16_bf16 {vr(CZ,4)}, {vr(z+2,2)}, {vr(p,2)}, {cc}")
    make_p(0)
    stamp()

    def late_setup():
        a.comment("late setup")
        a(f"s_mul_i32 {sr(sT1)}, s3, {WREG}")
        a(f"v_add_u32 {vr(eW)}, {sr(sT1)}, {vr(eW)}")
        a(f"v_lshrrev_b32 {vr(T)}, 5, {vr(eLane)}")
        a(f"s_lshl_b32 {sr(sT1)}, s3, 1")
        a(f"v_add_u32 {vr(T)}, {sr(sT1)}, {vr(T)}")
        a(f"v_mul_u32_u24 {vr(eR)}, {HS}, {vr(T)}")
        a(f"v_add_u32 {vr(eR)}, {vr(vS8)}, {vr(eR)}")
        a(f"v_lshlrev_b32 {vr(eML)}, 4, {vr(T)}")
        a(f"v_lshlrev_b32 {vr(eG)}, 10, {vr(T)}")
        a(f"v_lshl_add_u32 {vr(eG)}, {vr(vS8)}, 1, {vr(eG)}")
        a(f"s_lshl_b32 s22, s2, 13")
        a("s_cmp_lg_u32 s3, 3")
        a("s_cbranch_scc1 L_no_nonce2")
        a(f"v_readfirstlane_b32 {sr(sT1)}, {vr(NV)}")
        a("s_nop 3")
        a(f"s_cmp_eq_u32 {sr(sT1)}, 0")
        a(f"s_cselect_b32 {sr(sT1)}, {sr(sNon)}, {sr(sT1)}")
        a(f"v_mov_b32 {vr(NV)}, {sr(sT1)}")
        a(f"v_mov_b32 {vr(NV+1)}, 0")
        a(f"ds_write_b32 {vr(NV+1)}, {vr(NV)} offset:{LDS_N}")
        a.label("L_no_nonce2")
        a(f"v_lshrrev_b32 {vr(NV+2)}, 3, {vr(eLane)}")
        a(f"v_lshlrev_b32 {vr(NV+2)}, 13, {vr(NV+2)}")
        a(f"v_lshl_add_u32 {vr(NV+2)}, {vr(eH)}, 4, {vr(NV+2)}")
        a(f"v_lshlrev_b32 {vr(NV+3)}, 2, {vr(eH)}")
        a(f"v_mov_b32 {vr(NV+1)}, 0")
        a(f"v_lshlrev_b32 {vr(NV+4)}, 4, {vr(eH)}")
        a(f"s_lshl_b32 {sr(sT1)}, s3, 2")
        a(f"v_add_u32 {vr(NV+4)}, {sr(sT1)}, {vr(NV+4)}")
        a(f"ds_write_b32 {vr(NV+4)}, {vr(vMx)} offset:{LDS_M}")
        a(f"s_lshl_b32 s16, {sr(sPair)}, 18")
        a(f"s_lshl_b32 s17, {sr(sWgp)}, 9")
        a("s_add_u32 s16, s16, s17")
        a("s_lshl_b32 s17, s3, 7")
        a("s_add_u32 s16, s16, s17")
        a("s_add_u32 s17, s16, 0x10000")
        a("s_add_u32 s18, s16, 0x20000")
        a("s_add_u32 s19, s16, 0x30000")
        a(f"s_lshl_b32 s20, {sr(sPair)}, 11")
        a(f"s_lshl_b32 s21, {sr(sWgp)}, 7")
        a("s_add_u32 s20, s20, s21")
        a("s_lshl_b32 s21, s3, 5")
        a("s_add_u32 s20, s20, s21")
        a(f"s_mov_b32 s21, 0x{0x40000 if o.stamp else 0x1000000:x}")
        if o.own:
            a(f"s_and_b32 {sr(sT1)}, {sr(sWgp)}, 7")
            a(f"s_lshl_b32 {sr(sT1)}, {sr(sT1)}, 3")
            a(f"s_mov_b64 s[28:29], 0xff")
            a(f"s_lshl_b64 s[28:29], s[28:29], {sr(sT1)}")
            a(f"s_cmp_lt_u32 {sr(sWgp)}, 8")
            a("s_cselect_b64 s[24:25], s[28:29], 0")
            a("s_cselect_b64 s[26:27], 0, s[28:29]")
            a(f"s_lshl_b32 {sr(sT1)}, {sr(sWgp)}, 9")
            a(f"s_lshl_b32 {sr(sT2)}, s3, 7")
            a(f"s_add_u32 {sr(sT1)}, {sr(sT1)}, {sr(sT2)}")
            a(f"s_and_b32 {sr(sT1)}, {sr(sT1)}, 0x1fff")
            a(f"v_lshlrev_b32 {vr(NV+5)}, 4, {vr(eH)}")
            a(f"v_add_u32 {vr(NV+5)}, {sr(sT1)}, {vr(NV+5)}")

    vu0 = NC * upc
    for c in range(NC):
        u0 = vu0 + c * upc
        p = S + 4*c if o.ahead else PP + 2 * (c & 1)
        a.mute = MK[o.mutev]
        if o.ahead:
            todo = {0: [1], 1: [2]}.get(c, [2*c - 1, 2*c])
            for cc_ in todo:
                if cc_ < NC:
                    make_p(cc_)
        elif c + 1 < NC:
            make_p(c + 1)
        if c == 1:
            a.mute = ()
            late_setup()
            a.mute = MK[o.mutev]
        if c == o.warm:
            a("s_mov_b64 exec, 1")
            a.vmem(f"buffer_load_dword {vr(NV+6)}, {vr(NV+1)}, {sr(sWS,4)}, s22 offen {o.ldf}", "warm")
            a.vmem(f"buffer_load_dword {vr(NV+7)}, {vr(NV+1)}, {sr(sOUT,4)}, 0 offen {o.ldf}", "warm")
            a("s_mov_b64 exec, -1")
        last = c == NC - 1
        E = S
        if (c == 10 if o.ahead else last):
            a(f"v_mov_b32 {vr(mx0)}, {vr(vL)}")
            xlane("v_add_f32", mx0, mx1)
            a(f"ds_write_b32 {vr(NV+4)}, {vr(mx0)} offset:{LDS_L}")
            for x in range(32):
                a(f"v_sub_f32 {vr(O+x)}, {vr(O+x)}, {vr(CZ)}")
        for half in range(2):
            nn = half * 4 + 3
            rr = [reg(u0, half * 4 + e) for e in range(4)]
            if last:
                for e in range(4):
                    n2 = half * 4 + e
                    a.wait_vm({(u0 + n2 // U, n2 % U)})
                    for k in range(4):
                        a(f"v_cvt_f32_i32 {vr(rr[e]+k)}, {vr(rr[e]+k)}")
                    if e & 1:
                        for cc in range(4):
                            t = T + 8*half + 2*cc + (e >> 1)
                            a(f"v_cvt_pk_bf16_f32 {vr(t)}, {vr(rr[e-1]+cc)}, {vr(rr[e]+cc)}")
                    if half == 1 and e == 1:
                        for cc in range(4):
                            for r in range(4):
                                a0 = O + 4*cc + r
                                a(f"v_add_f32_dpp {vr(E+4*r+cc)}, {vr(a0)}, {vr(a0)} row_ror:8 row_mask:0xf bank_mask:0x3")
            else:
                a.wait_vm({(u0 + nn // U, nn % U)})
                for e in range(4):
                    for k in range(4):
                        a(f"v_cvt_f32_i32 {vr(rr[e]+k)}, {vr(rr[e]+k)}")
                for cc in range(4):
                    t = T + 8*half + 2*cc
                    a(f"v_cvt_pk_bf16_f32 {vr(t)}, {vr(rr[0]+cc)}, {vr(rr[1]+cc)}")
                    a(f"v_cvt_pk_bf16_f32 {vr(t+1)}, {vr(rr[2]+cc)}, {vr(rr[3]+cc)}")
            if U == 4 or half == 1:
                issue(u0 + nn // U + R)
            for cc in range(4):
                t = T + 8*half + 2*cc
                acc = O + 16*half + 4*cc
                cin = "0" if c == 0 else vr(acc, 4)
                a(f"v_mfma_f32_16x16x16_bf16 {vr(acc,4)}, {vr(t,2)}, {vr(p,2)}, {cin}")
    a.mute = ()
    stamp()

    a("s_nop 4")
    for cc in range(4):
        for r in range(4):
            a1 = O + 16 + 4*cc + r
            a(f"v_add_f32_dpp {vr(E+4*r+cc)}, {vr(a1)}, {vr(a1)} row_ror:8 row_mask:0xf bank_mask:0xc")
            if cc == 3:
                a(f"ds_write_b128 {vr(eW)}, {vr(E+4*r,4)} offset:{16*r}")
    a("s_waitcnt lgkmcnt(0)")
    a("s_barrier")
    F = 0
    Mr, Lr = F + 16, F + 20
    P = 48
    def poll_issue():
        for n in range(4):
            if o.own and n < 2:
                a(f"s_not_b64 exec, s[{24+2*n}:{25+2*n}]")
            if o.own and n == 2:
                a("s_mov_b64 exec, -1")
            a(f"buffer_load_dwordx4 {vr(P+4*n,4)}, {vr(NV+2)}, {sr(sWS,4)}, s{16+n} offen {o.ldf}")
    a(f"ds_read_b128 {vr(Mr,4)}, {vr(eML)} offset:{LDS_M}")
    a(f"ds_read_b128 {vr(Lr,4)}, {vr(eML)} offset:{LDS_L}")
    for w in range(4):
        a(f"ds_read_b64 {vr(F+4*w,2)}, {vr(eR)} offset:{w*WREG}")
        a(f"ds_read_b64 {vr(F+4*w+2,2)}, {vr(eR)} offset:{w*WREG+256}")
    a(f"ds_read_b32 {vr(NV)}, {vr(NV+1)} offset:{LDS_N}")
    if o.own == 1:
        a(f"s_cmp_lt_u32 {sr(sWgp)}, 16")
        a("s_cbranch_scc0 L_no_prepoll")
        poll_issue()
        a.label("L_no_prepoll")
    a("s_waitcnt lgkmcnt(10)")
    G = F + 24
    a(f"v_max3_f32 {vr(G)}, {vr(Mr)}, {vr(Mr+1)}, {vr(Mr+2)}")
    a(f"v_max_f32 {vr(G)}, {vr(G)}, {vr(Mr+3)}")
    for w in range(4):
        a(f"v_sub_f32 {vr(Mr+w)}, {vr(Mr+w)}, {vr(G)}")
    for w in range(4):
        a(f"v_exp_f32 {vr(Mr+w)}, {vr(Mr+w)}")
    a("s_waitcnt lgkmcnt(9)")
    a(f"v_mul_f32 {vr(G+1)}, {vr(Mr)}, {vr(Lr)}")
    for w in range(1, 4):
        a(f"v_fmac_f32 {vr(G+1)}, {vr(Mr+w)}, {vr(Lr+w)}")
    a(f"v_rcp_f32 {vr(G+2)}, {vr(G+1)}")
    a(f"v_log_f32 {vr(G+3)}, {vr(G+1)}")
    a("s_nop 0")
    for w in range(4):
        a(f"v_mul_f32 {vr(Mr+w)}, {vr(Mr+w)}, {vr(G+2)}")
    O1, O2 = 32, 36
    a(f"v_add_f32 {vr(O1+2)}, {vr(G)}, {vr(G+3)}")
    a(f"v_add_f32 {vr(O2+2)}, {vr(G)}, {vr(G+3)}")
    a("s_waitcnt lgkmcnt(0)")
    dst = [O1, O1+1, O2, O2+1]
    for k in range(4):
        a(f"v_mul_f32 {vr(dst[k])}, {vr(Mr)}, {vr(F+k)}")
    for w in range(1, 4):
        for k in range(4):
            a(f"v_fmac_f32 {vr(dst[k])}, {vr(Mr+w)}, {vr(F+4*w+k)}")
    a(f"v_mov_b32 {vr(O1+3)}, {vr(NV)}")
    a(f"v_mov_b32 {vr(O2+3)}, {vr(NV)}")
    a(f"s_cmp_lt_u32 {sr(sWgp)}, {0 if o.nopoll else 16}")
    if o.nopoll == 2:
        a.mute = ("buffer_store",)
    a(f"buffer_store_dwordx4 {vr(O1,4)}, {vr(eG)}, {sr(sWS,4)}, s22 offen {o.stf}")
    a(f"buffer_store_dwordx4 {vr(O2,4)}, {vr(eG)}, {sr(sWS,4)}, s22 offen offset:512 {o.stf}")
    a.mute = ()
    if o.stamp == 2:
        a("s_memrealtime s[82:83]")
        a("s_memrealtime s[80:81]")
    a("s_cbranch_scc0 L_fin_done")
    if o.own:
        if o.own == 2:
            poll_issue()
        a(f"ds_write_b128 {vr(eG)}, {vr(O1,4)} offset:{LDS_S}")
        a(f"ds_write_b128 {vr(eG)}, {vr(O2,4)} offset:{LDS_S+512}")
        a("s_waitcnt lgkmcnt(0)")
        a("s_barrier")
        a("s_mov_b64 exec, s[24:25]")
        a(f"ds_read_b128 {vr(P,4)}, {vr(NV+5)} offset:{LDS_S}")
        a("s_mov_b64 exec, s[26:27]")
        a(f"ds_read_b128 {vr(P+4,4)}, {vr(NV+5)} offset:{LDS_S}")
        a("s_mov_b64 exec, -1")
        a(f"s_waitcnt vmcnt({2 if o.own == 1 else 0}) lgkmcnt(0)")
        a("s_branch L_check")
    if o.sel:
        for n in range(4):
            a(f"s_mov_b64 s[{24+2*n}:{25+2*n}], -1")
        a.label("L_poll")
        for n in range(4):
            a(f"s_mov_b64 exec, s[{24+2*n}:{25+2*n}]")
            a(f"s_cbranch_execz L_skip{n}")
            a(f"buffer_load_dwordx4 {vr(P+4*n,4)}, {vr(NV+2)}, {sr(sWS,4)}, s{16+n} offen {o.ldf}")
            a.label(f"L_skip{n}")
        a("s_mov_b64 exec, -1")
        a("s_sub_u32 s21, s21, 1")
        a("s_cbranch_scc1 L_fin_done")
        a("s_waitcnt vmcnt(0)")
        for n in range(4):
            a(f"v_xor_b32 {vr(P+16+n)}, {vr(P+4*n+3)}, {vr(NV)}")
            a(f"v_xor_b32_dpp {vr(P+20+n)}, {vr(P+4*n+2)}, {vr(P+4*n+2)} quad_perm:[1,0,3,2] {DPP}")
        for n in range(4):
            a(f"v_or_b32 {vr(P+16+n)}, {vr(P+16+n)}, {vr(P+20+n)}")
        for n in range(4):
            a(f"v_cmp_ne_u32 s[{24+2*n}:{25+2*n}], 0, {vr(P+16+n)}")
        a(f"v_max3_f32 {vr(P+24)}, {vr(P+2)}, {vr(P+6)}, {vr(P+10)}")
        a(f"v_max_f32 {vr(P+24)}, {vr(P+24)}, {vr(P+14)}")
        a("s_or_b64 s[32:33], s[24:25], s[26:27]")
        a("s_or_b64 s[34:35], s[28:29], s[30:31]")
        a("s_or_b64 s[32:33], s[32:33], s[34:35]")
        a("s_cbranch_scc1 L_poll")
    else:
        a.label("L_poll")
        poll_issue()
        a("s_sub_u32 s21, s21, 1")
        a("s_cbranch_scc1 L_fin_done")
        if o.own:
            a("s_waitcnt vmcnt(0)")
            a.label("L_check")
        for n in range(4):
            if not o.own:
                a(f"s_waitcnt vmcnt({3-n})")
            a(f"v_xor_b32 {vr(P+16+n)}, {vr(P+4*n+3)}, {vr(NV)}")
            a(f"v_xor_b32_dpp {vr(P+20+n)}, {vr(P+4*n+2)}, {vr(P+4*n+2)} quad_perm:[1,0,3,2] {DPP}")
        a(f"v_or3_b32 {vr(P+16)}, {vr(P+16)}, {vr(P+17)}, {vr(P+18)}")
        a(f"v_or3_b32 {vr(P+20)}, {vr(P+20)}, {vr(P+21)}, {vr(P+22)}")
        a(f"v_or3_b32 {vr(P+16)}, {vr(P+16)}, {vr(P+19)}, {vr(P+23)}")
        a(f"v_or_b32 {vr(P+16)}, {vr(P+16)}, {vr(P+20)}")
        a(f"v_cmp_ne_u32 vcc, 0, {vr(P+16)}")
        a(f"v_max3_f32 {vr(P+24)}, {vr(P+2)}, {vr(P+6)}, {vr(P+10)}")
        a(f"v_max_f32 {vr(P+24)}, {vr(P+24)}, {vr(P+14)}")
        if o.sleep:
            a("s_cbranch_vccz L_poll_ok")
            a(f"s_sleep {o.sleep}")
            a("s_branch L_poll")
            a.label("L_poll_ok")
        else:
            a("s_cbranch_vccnz L_poll")
    if o.stamp == 2:
        a("s_memrealtime s[80:81]")
    def xl3(op, xs, ts):
        a("s_nop 1")
        for x in xs:
            a(f"{op}_dpp {vr(x)}, {vr(x)}, {vr(x)} row_ror:8 {DPP}")
        for sw in ("v_permlane16_swap_b32", "v_permlane32_swap_b32"):
            for x, t in zip(xs, ts):
                a(f"v_mov_b32 {vr(t)}, {vr(x)}")
            a("s_nop 1")
            for x, t in zip(xs, ts):
                a(f"{sw} {vr(x)}, {vr(t)}")
            a("s_nop 1")
            for x, t in zip(xs, ts):
                a(f"{op} {vr(x)}, {vr(x)}, {vr(t)}")
    xl3("v_max_f32", [P+24], [P+25])
    for n in range(4):
        a(f"v_sub_f32 {vr(P+4*n+2)}, {vr(P+4*n+2)}, {vr(P+24)}")
    for n in range(4):
        a(f"v_exp_f32 {vr(P+4*n+2)}, {vr(P+4*n+2)}")
    W, A0, A1 = P+26, P+27, P+28
    a(f"v_add_f32 {vr(W)}, {vr(P+2)}, {vr(P+6)}")
    a(f"v_mul_f32 {vr(A0)}, {vr(P+2)}, {vr(P)}")
    a(f"v_mul_f32 {vr(A1)}, {vr(P+2)}, {vr(P+1)}")
    a(f"v_add_f32 {vr(W)}, {vr(W)}, {vr(P+10)}")
    for n in range(1, 4):
        a(f"v_fmac_f32 {vr(A0)}, {vr(P+4*n+2)}, {vr(P+4*n)}")
        a(f"v_fmac_f32 {vr(A1)}, {vr(P+4*n+2)}, {vr(P+4*n+1)}")
    a(f"v_add_f32 {vr(W)}, {vr(W)}, {vr(P+14)}")
    xl3("v_add_f32", [W, A0, A1], [P+29, P+30, P+31])
    a(f"v_rcp_f32 {vr(W)}, {vr(W)}")
    a("s_mov_b64 exec, 0xff")
    a(f"v_mul_f32 {vr(A0)}, {vr(A0)}, {vr(W)}")
    a(f"v_mul_f32 {vr(A1)}, {vr(A1)}, {vr(W)}")
    a(f"v_cvt_pk_bf16_f32 {vr(A0)}, {vr(A0)}, {vr(A1)}")
    a(f"buffer_store_dword {vr(A0)}, {vr(NV+3)}, {sr(sOUT,4)}, s20 offen")
    a("s_mov_b64 exec, -1")
    a.label("L_fin_done")
    if o.stamp:
        stamp()
        a("s_waitcnt lgkmcnt(0)")
        a("s_getreg_b32 s5, hwreg(HW_REG_XCC_ID)")
        a("s_lshl_b32 s4, s2, 2")
        a("s_add_u32 s4, s4, s3")
        a("s_lshl_b32 s4, s4, 6")
        a("s_add_u32 s4, s4, 0x4000000")
        a("s_nop 1")
        for i in range(8):
            a(f"v_mov_b32 v{i}, s{72+2*i}")
        a("v_mov_b32 v8, s5")
        a("v_mov_b32 v9, s21")
        a("v_mov_b32 v12, 0")
        a("s_mov_b64 exec, 1")
        a(f"buffer_store_dwordx4 v[0:3], v12, {sr(sWS,4)}, s4 offen")
        a(f"buffer_store_dwordx4 v[4:7], v12, {sr(sWS,4)}, s4 offen offset:16")
        a(f"buffer_store_dwordx2 v[8:9], v12, {sr(sWS,4)}, s4 offen offset:32")
    a.label("L_main_end")
    a("s_endpgm")
    lds = LDS_N + 16
    return a.text(), nvgpr, lds

def main():
    ap = argparse.ArgumentParser()
    ap.add_argument("-o", default="/dev/stdout")
    ap.add_argument("--ring", type=int, default=3)
    ap.add_argument("--unit", type=int, default=8)
    ap.add_argument("--stamp", type=int, default=0)
    ap.add_argument("--ksub", type=int, default=4)
    ap.add_argument("--kfirst", type=int, default=1)
    ap.add_argument("--nat", type=int, default=-1)
    ap.add_argument("--pre", type=int, default=2)
    ap.add_argument("--thr", type=int, default=1)
    ap.add_argument("--own", type=int, default=0)
    ap.add_argument("--ahead", type=int, default=0)
    ap.add_argument("--tlb", type=int, default=0)
    ap.add_argument("--bar", type=int, default=0)
    ap.add_argument("--bar1", type=int, default=99)
    ap.add_argument("--smnt", type=int, default=0)
    ap.add_argument("--nopoll", type=int, default=0)
    ap.add_argument("--nodma", type=int, default=0)
    ap.add_argument("--mutek", type=int, default=0)
    ap.add_argument("--mutev", type=int, default=0)
    ap.add_argument("--vco", type=int, default=0)
    ap.add_argument("--cpf", type=int, default=0)
    ap.add_argument("--cpm", type=int, default=32)
    ap.add_argument("--start", type=int, default=0)
    ap.add_argument("--ilv", type=int, default=0)
    ap.add_argument("--sel", type=int, default=0)
    ap.add_argument("--warm", type=int, default=-1)
    ap.add_argument("--stf", default="sc1")
    ap.add_argument("--ldf", default="sc1")
    ap.add_argument("--sleep", type=int, default=0)
    ap.add_argument("--thr0", type=int, default=2)
    ap.add_argument("--thr1", type=int, default=99)
    ap.add_argument("--thrall", type=int, default=1)
    ap.add_argument("--thro", type=int, default=-1)
    ap.add_argument("--thrm", type=int, default=1)
    ap.add_argument("--ldspad", type=int, default=81920)
    o = ap.parse_args()
    k1 = NAME + "_kernel"
    body1, nv1, lds1 = gen_main(o, k1)
    s = HEADER
    s += f"; @launch grid=(256,1,1) block=(256,1,1) lds={lds1}\n"
    s += DOC
    s += '.amdgcn_target "amdgcn-amd-amdhsa--gfx950"\n.text\n'
    s += f".globl {k1}\n.p2align 8\n.type {k1},@function\n{body1}"
    s += '.section .rodata,"a"\n.p2align 6\n'
    s += kd(k1, 264, 96)
    open(o.o, "w").write(s)

if __name__ == "__main__":
    main()
```

```python
import sys, math, struct, argparse
from gen import HEADER, NAME, Asm, vr, sr, f32bits, kd

DPP = "row_mask:0xf bank_mask:0xf"
NC = 16
DOC = """;
;  * waves merge through LDS (exact max/sum rescale); each workgroup publishes {o0,o1,lse,tag} granules to d_ws (sc1);
"""

def gen_main(o, kname):
    R = o.ring
    U = o.unit
    nt = " nt"
    a = Asm()
    Q, OX, S, CZ, T, KF, KR = 0, 16, 32, 96, 100, 116, 124
    O = 0
    vKa, vKb, vV, vW, vR, vM, vS8, vG8 = 128, 129, 130, 131, 132, 133, 134, 135
    NV = 136
    PP = 144
    SZ = 148
    RB = 160
    mx0, mx1, vL, vV2 = 156, 157, 158, 159
    nvgpr = RB + 4 * U * R
    assert nvgpr <= 256, nvgpr
    sK, sV, sQ, sSM, sWS, sDBG, sOUT = 36, 40, 44, 48, 52, 56, 60
    sA = 4
    sB0, sB1 = 5, 6
    sPerm, sC1, sHi, sPair = 12, 13, 14, 15
    sT1, sT2, sT3, sWgp = 64, 65, 66, 67
    sMask = 68
    sNon = 70
    c1 = (128.0 ** -0.5) * math.log2(math.e)
    RS = 288
    WREG = 16 * RS
    LDS_S = 4 * WREG
    LDS_Q = LDS_S + 8192
    LDS_M = LDS_Q + 2048
    LDS_L = LDS_M + 128
    LDS_N = LDS_L + 128
    HS = 528
    def coff(c):
        return ((c & 3) << 15) | ((c >> 2) << 22)

    nst = [0]
    def stamp():
        if o.stamp:
            a(f"s_memrealtime s[{72+2*nst[0]}:{73+2*nst[0]}]")
            nst[0] += 1
    def srd_tail(d, size):
        a(f"s_mov_b32 {sr(d+2)}, 0x{size:x}")
        a(f"s_mov_b32 {sr(d+3)}, 0x20000")

    a.label(kname)
    a("s_cmp_ge_u32 s2, 256")
    a("s_cbranch_scc1 L_main_end")
    stamp()
    a(f"v_lshrrev_b32 v1, 6, v0")
    a(f"s_load_dwordx2 {sr(sK,2)}, s[0:1], 8")
    a(f"v_readfirstlane_b32 s3, v1")
    a(f"s_load_dwordx2 {sr(sQ,2)}, s[0:1], 0")
    a(f"s_load_dwordx2 {sr(sDBG,2)}, s[0:1], 64")
    a(f"v_and_b32 v2, 63, v0")
    a(f"s_lshl_b32 {sr(sT2)}, s3, 3")
    a(f"s_add_u32 {sr(sT2)}, {sr(sT2)}, 24")
    a(f"s_load_dwordx2 {sr(sSM,2)}, s[0:1], {sr(sT2)}")
    a(f"s_memrealtime {sr(sNon,2)}")
    if o.tlb:
        a(f"s_load_dwordx2 {sr(sV,2)}, s[0:1], 16")
        a(f"s_load_dwordx2 {sr(sWS,2)}, s[0:1], 72")
        a(f"s_load_dwordx2 {sr(sOUT,2)}, s[0:1], 56")
        srd_tail(sV, 0x8000000)
        srd_tail(sWS, 0x20000000)
        srd_tail(sOUT, 16384)
    a(f"v_lshlrev_b32 {vr(vKa)}, 4, v2")
    a(f"v_add_u32 {vr(vKb)}, 0x1000, {vr(vKa)}")
    srd_tail(sK, 0x8000000)
    srd_tail(sSM, 524288)
    srd_tail(sQ, 16384)
    srd_tail(sDBG, 256)
    if (o.thr >= 0 and not o.thrall) or o.par:
        a("s_getreg_b32 s23, hwreg(HW_REG_XCC_ID)")
    a(f"s_lshr_b32 {sr(sPair)}, s2, 5")
    a(f"s_and_b32 {sr(sWgp)}, s2, 31")
    a(f"s_lshl_b32 {sr(sA)}, {sr(sPair)}, 24")
    a(f"s_lshl_b32 {sr(sT2)}, {sr(sWgp)}, 17")
    a(f"s_or_b32 {sr(sA)}, {sr(sA)}, {sr(sT2)}")
    a(f"s_lshr_b32 {sr(sT3)}, {sr(sA)}, 8")
    a(f"s_lshl_b32 {sr(sT2)}, s3, {10 if o.ilv else 13}")
    a(f"s_or_b32 {sr(sA)}, {sr(sA)}, {sr(sT2)}")
    a(f"v_and_b32 v3, 31, v2")
    a(f"v_lshrrev_b32 v7, 5, v2")
    a(f"v_lshlrev_b32 v6, 14, v7")
    a(f"v_lshl_add_u32 {vr(T)}, v3, 4, v6")
    a(f"v_mov_b32 {vr(NV+1)}, 0")
    a(f"v_mov_b32 {vr(NV+2)}, 0")
    a(f"s_lshl_b32 {sr(sT1)}, s3, 11")
    a(f"s_add_u32 m0, {sr(sT1)}, {LDS_S}")
    a("s_waitcnt lgkmcnt(0)")
    stamp()

    upc = 8 // U
    units = [("K", c, h) for c in range(NC) for h in range(upc)] + [("V", c, h) for c in range(NC) for h in range(upc)]
    def ubuf(ui):
        return RB + 4 * U * (ui % R)
    def issue(ui):
        if ui >= len(units):
            return
        kind, c, h = units[ui]
        b = ubuf(ui)
        if not (o.ilv and kind == "K"):
            if c == 0:
                sb = sA
            else:
                sb = sB0 if (ui & 1) == 0 else sB1
                a(f"s_add_u32 {sr(sb)}, {sr(sA)}, 0x{coff(c):x}")
        if o.thr >= 0 and o.thr0 <= ui < o.thr1:
            if o.thrall:
                a(f"s_waitcnt vmcnt({o.thr})")
                if o.bar and ui % o.bar == 0 and ui < o.bar1:
                    a("s_barrier")
            elif o.thro >= 0:
                a(f"s_waitcnt vmcnt({o.thro})")
                if ui % o.thrm == 0:
                    a("s_bitcmp1_b32 s23, 0")
                    a(f"s_cbranch_scc1 L_thr{ui}")
                    a(f"s_waitcnt vmcnt({o.thr})")
                    a.label(f"L_thr{ui}")
            else:
                a("s_bitcmp1_b32 s23, 0")
                a(f"s_cbranch_scc1 L_thr{ui}")
                a(f"s_waitcnt vmcnt({o.thr})")
                a.label(f"L_thr{ui}")
        if o.ilv and kind == "K":
            for i in range(U):
                n = h * U + i
                off = coff(c) + (n >> 1) * 8192
                if (n & 1) == 0:
                    if off == 0:
                        sb = sA
                    else:
                        sb = sB0 if ((n >> 1) & 1) == 0 else sB1
                        a(f"s_add_u32 {sr(sb)}, {sr(sA)}, 0x{off:x}")
                va = vKa if (n & 1) == 0 else vKb
                a.vmem(f"buffer_load_dwordx4 {vr(b + 4*i, 4)}, {vr(va)}, {sr(sK,4)}, {sr(sb)} offen{nt}", (ui, i))
            return
        for i in range(U):
            n = h * U + i
            if o.mid >= 0 and i > 0 and i % o.midn == 0 and o.thr0 <= ui < o.thr1:
                a(f"s_waitcnt vmcnt({o.mid})")
            if o.par and i == 4 and o.thr0 <= ui < o.par1 and ui % o.par == 0:
                a("s_bitcmp1_b32 s23, 0")
                a(f"s_cbranch_scc1 L_par{ui}")
                a(f"s_waitcnt vmcnt({o.parw})")
                a.label(f"L_par{ui}")
            if kind == "K":
                va = vKa if n < 4 else vKb
                a.vmem(f"buffer_load_dwordx4 {vr(b + 4*i, 4)}, {vr(va)}, {sr(sK,4)}, {sr(sb)} offen offset:{(n&3)*1024}{nt}", (ui, i))
            elif o.ilv:
                half, e = n >> 2, n & 3
                va = vV if e < 2 else vV2
                a.vmem(f"buffer_load_dwordx4 {vr(b + 4*i, 4)}, {vr(va)}, {sr(sV,4)}, {sr(sb)} offen offset:{(e&1)*512+half*256}{nt}", (ui, i))
            elif o.vco:
                va = vKa if n < 4 else vKb
                a.vmem(f"buffer_load_dwordx4 {vr(b + 4*i, 4)}, {vr(va)}, {sr(sV,4)}, {sr(sb)} offen offset:{(n&3)*1024}{nt}", (ui, i))
            else:
                half, e = n >> 2, n & 3
                a.vmem(f"buffer_load_dwordx4 {vr(b + 4*i, 4)}, {vr(vV)}, {sr(sV,4)}, {sr(sb)} offen offset:{e*512+half*256}{nt}", (ui, i))
    def reg(kind_base_ui, n):
        return ubuf(kind_base_ui + n // U) + 4 * (n % U)

    def nonce_atomic():
        a(f"s_lshl_b32 {sr(sT1)}, {sr(sPair)}, 5")
        a("s_cmp_lg_u32 s3, 3")
        a("s_cbranch_scc1 L_no_nonce")
        a(f"s_or_b32 {sr(sNon)}, {sr(sNon)}, 1")
        a(f"v_mov_b32 {vr(NV)}, {sr(sNon)}")
        a("s_mov_b64 exec, 1")
        a(f"buffer_atomic_cmpswap {vr(NV,2)}, {vr(NV+2)}, {sr(sDBG,4)}, {sr(sT1)} offen sc0")
        a("s_mov_b64 exec, -1")
        a.label("L_no_nonce")
    if o.nodma:
        _vm = a.vmem
        def vm2(t, tag):
            if tag == "sm" and (o.nodma & 1):
                return
            _vm(t, tag)
        a.vmem = vm2
        if o.nodma & 2:
            a.mute = ("buffer_atomic",)
    if o.start:
        if o.start == 2:
            nonce_atomic()
        issue(0); issue(1)
        if o.start == 1:
            nonce_atomic()
    else:
        if o.nat < 0:
            nonce_atomic()
        if o.kfirst:
            issue(0)
    a.vmem(f"buffer_load_dwordx4 {vr(T)}, {sr(sSM,4)}, {sr(sT3)} offen{' nt' if o.smnt else ''} lds", "sm")
    a(f"s_add_u32 m0, m0, 1024")
    a(f"s_add_u32 {sr(sT3)}, {sr(sT3)}, 0x8000")
    a.vmem(f"buffer_load_dwordx4 {vr(T)}, {sr(sSM,4)}, {sr(sT3)} offen{' nt' if o.smnt else ''} lds", "sm")
    a(f"s_lshl_b32 {sr(sT2)}, s3, 9")
    a(f"s_add_u32 m0, {sr(sT2)}, {LDS_Q}")
    a(f"s_lshl_b32 {sr(sT3)}, {sr(sPair)}, 11")
    a(f"s_add_u32 {sr(sT3)}, {sr(sT3)}, {sr(sT2)}")
    a("s_mov_b32 exec_hi, 0")
    a.vmem(f"buffer_load_dwordx4 {vr(vKa)}, {sr(sQ,4)}, {sr(sT3)} offen lds", "sm")
    a("s_mov_b32 exec_hi, -1")
    if o.tlb:
        a(f"s_lshl_b32 {sr(sT1)}, s3, 22")
        a(f"s_add_u32 {sr(sT1)}, {sr(sT1)}, {sr(sA)}")
        a("s_mov_b64 exec, 1")
        a.vmem(f"buffer_load_dword {vr(S+56)}, {vr(vKa)}, {sr(sV,4)}, {sr(sT1)} offen nt", "tlb")
        a.vmem(f"buffer_load_dword {vr(S+57)}, {vr(vKa)}, {sr(sK,4)}, {sr(sT1)} offen nt", "tlb")
        if o.tlb >= 2:
            a.vmem(f"buffer_load_dword {vr(S+58)}, {vr(vKa)}, {sr(sWS,4)}, 0 offen", "tlb")
            a.vmem(f"buffer_load_dword {vr(S+59)}, {vr(vKa)}, {sr(sOUT,4)}, 0 offen", "tlb")
        a("s_mov_b64 exec, -1")
    if o.cpf:
        a("s_getpc_b64 s[24:25]")
        a.label("L_pc")
        a(f"s_sub_u32 s24, s24, L_pc-{kname}")
        a("s_subb_u32 s25, s25, 0")
        a(f"s_lshr_b32 {sr(sT1)}, s2, 3")
        a(f"s_lshl_b32 {sr(sT1)}, {sr(sT1)}, 2")
        a(f"s_add_u32 {sr(sT1)}, {sr(sT1)}, s3")
        a(f"s_and_b32 {sr(sT1)}, {sr(sT1)}, {o.cpm - 1}")
        a(f"s_mul_i32 {sr(sT1)}, {sr(sT1)}, {o.cpf * 1024}")
        a(f"s_min_u32 {sr(sT1)}, {sr(sT1)}, L_main_end-{kname}-{o.cpf*1024}")
        a(f"v_add_u32 {vr(S+60)}, {sr(sT1)}, {vr(vKa)}")
        for i in range(o.cpf):
            a.vmem(f"global_load_dwordx4 {vr(S+56,4)}, {vr(S+60)}, s[24:25] offset:{i*1024}", "cpf")
    npre = min(R, o.pre)
    if not o.start:
        for ui in range(1 if o.kfirst else 0, npre):
            issue(ui)
    if not o.tlb:
        a(f"s_load_dwordx2 {sr(sV,2)}, s[0:1], 16")
        a(f"s_load_dwordx2 {sr(sWS,2)}, s[0:1], 72")
        a(f"s_load_dwordx2 {sr(sOUT,2)}, s[0:1], 56")
    a(f"v_lshrrev_b32 v4, 4, v2")
    a(f"v_and_b32 v5, 15, v2")
    a(f"v_lshlrev_b32 v6, 4, v5")
    a(f"v_lshl_add_u32 {vr(vV)}, v4, {13 if o.ilv else 11}, v6")
    if o.ilv:
        a(f"v_add_u32 {vr(vV2)}, 0x1000, {vr(vV)}")
    a(f"v_lshlrev_b32 {vr(vS8)}, 3, v3")
    a(f"s_lshl_b32 {sr(sT1)}, s3, {2 if o.ilv else 5}")
    a(f"v_lshlrev_b32 v6, {5 if o.ilv else 3}, v4")
    a(f"v_add_u32 {vr(vG8)}, {sr(sT1)}, v6")
    a(f"v_and_b32 v9, 7, v2")
    a(f"v_lshlrev_b32 v6, 8, v9")
    a(f"v_lshl_add_u32 {vr(T+1)}, v4, 4, v6")
    a(f"s_mul_i32 {sr(sT1)}, s3, {WREG}")
    a(f"v_mul_u32_u24 v6, {RS}, v7")
    a(f"v_add3_u32 {vr(vW)}, v6, {vr(vS8)}, {sr(sT1)}")
    a(f"v_mul_u32_u24 v6, {RS}, v5")
    a(f"v_lshl_add_u32 v6, v4, 4, v6")
    a(f"v_add_u32 {vr(vR)}, {sr(sT1)}, v6")
    a(f"v_lshrrev_b32 v6, 3, v5")
    a(f"v_sub_u32 v6, 0, v6")
    a(f"v_lshlrev_b32 {vr(vM)}, 16, v6")
    srd_tail(sV, 0x8000000)
    srd_tail(sWS, 0x20000000)
    srd_tail(sOUT, 16384)
    a(f"s_mov_b32 {sr(sPerm)}, 0x07060302")
    a(f"s_mov_b32 {sr(sC1)}, 0x{f32bits(c1):08x}")
    a(f"s_mov_b32 {sr(sHi)}, 0xffff0000")
    stamp()
    if o.start:
        npre = 3
        a(f"s_waitcnt vmcnt({o.thr + 3})")
        sv = o.thr0; o.thr0 = 3
        issue(2)
        o.thr0 = sv
    if not (o.nodma & 1):
        a.wait_vm({"sm"})
    if not (o.nodma & 4):
        a("s_barrier")
    for m in range(4):
        a(f"ds_read_b128 {vr(Q+4*m,4)}, {vr(T+1)} offset:{LDS_Q + m*64}")
    def read_ks(c):
        off = (c >> 2) * 512 + ((c >> 1) & 1) * 256
        a(f"ds_read_b64 {vr(KR,2)}, {vr(vS8)} offset:{LDS_S + off}")
        a(f"ds_read_b64 {vr(KR+2,2)}, {vr(vS8)} offset:{LDS_S + 2048 + off}")
    def read_sz(c):
        off = (c >> 2) * 512 + (c & 3) * 128
        z = SZ + 4 * (c & 1)
        if o.ilv:
            a(f"ds_read_b32 {vr(z)}, {vr(vG8)} offset:{LDS_S + 4096 + off}")
            a(f"ds_read_b32 {vr(z+1)}, {vr(vG8)} offset:{LDS_S + 4096 + off + 16}")
            a(f"ds_read_b32 {vr(z+2)}, {vr(vG8)} offset:{LDS_S + 6144 + off}")
            a(f"ds_read_b32 {vr(z+3)}, {vr(vG8)} offset:{LDS_S + 6144 + off + 16}")
        else:
            a(f"ds_read_b64 {vr(z,2)}, {vr(vG8)} offset:{LDS_S + 4096 + off}")
            a(f"ds_read_b64 {vr(z+2,2)}, {vr(vG8)} offset:{LDS_S + 6144 + off}")
    read_ks(0)
    for ui in range(npre, R):
        issue(ui)

    MK = {0: (), 1: ("v_", "ds_", "s_nop", "s_waitcnt lgkm"), 2: ("ds_", "s_waitcnt lgkm"), 3: ("v_",)}
    a.mute = MK[o.mutek]
    for c in range(NC):
        u0 = c * upc
        if (c & 1) == 0:
            a("s_waitcnt lgkmcnt(0)")
            a(f"v_lshlrev_b32 {vr(KF)}, 16, {vr(KR)}")
            a(f"v_and_b32 {vr(KF+1)}, {sr(sHi)}, {vr(KR)}")
            a(f"v_lshlrev_b32 {vr(KF+2)}, 16, {vr(KR+1)}")
            a(f"v_and_b32 {vr(KF+3)}, {sr(sHi)}, {vr(KR+1)}")
            a(f"v_lshlrev_b32 {vr(KF+4)}, 16, {vr(KR+2)}")
            a(f"v_and_b32 {vr(KF+5)}, {sr(sHi)}, {vr(KR+2)}")
            a(f"v_lshlrev_b32 {vr(KF+6)}, 16, {vr(KR+3)}")
            a(f"v_and_b32 {vr(KF+7)}, {sr(sHi)}, {vr(KR+3)}")
            for k in range(4):
                a(f"v_mul_f32 {vr(KF+4+k)}, -{vr(KF+4+k)}, {vr(KF+k)}")
        if c >= 2:
            s0 = S + 4*(c-2)
            if c == 2:
                a(f"v_max_f32 {vr(mx0)}, {vr(s0)}, {vr(s0+1)}")
                a(f"v_max_f32 {vr(mx1)}, {vr(s0+2)}, {vr(s0+3)}")
            else:
                a(f"v_max3_f32 {vr(mx0)}, {vr(mx0)}, {vr(s0)}, {vr(s0+1)}")
                a(f"v_max3_f32 {vr(mx1)}, {vr(mx1)}, {vr(s0+2)}, {vr(s0+3)}")
        for n in range(8):
            if n % o.ksub == 0:
                nn = n + o.ksub - 1
                a.wait_vm({(u0 + nn // U, nn % U)})
                if c == 0 and n == 0:
                    stamp()
            x = reg(u0, n)
            for k in range(4):
                a(f"v_cvt_f32_i32 {vr(x+k)}, {vr(x+k)}")
            a(f"v_pk_fma_f32 {vr(x,2)}, {vr(x,2)}, {vr(KF,2)}, {vr(KF+4,2)}")
            a(f"v_pk_fma_f32 {vr(x+2,2)}, {vr(x+2,2)}, {vr(KF+2,2)}, {vr(KF+6,2)}")
            a(f"v_cvt_pk_bf16_f32 {vr(x)}, {vr(x)}, {vr(x+1)}")
            a(f"v_cvt_pk_bf16_f32 {vr(x+1)}, {vr(x+2)}, {vr(x+3)}")
            a(f"ds_write_b64 {vr(vW)}, {vr(x,2)} offset:{n*2*RS}")
            if (n + 1) % U == 0 and n < 7:
                issue(u0 + n // U + R)
        for m in range(4):
            a(f"ds_read_b128 {vr(T+4*m,4)}, {vr(vR)} offset:{m*64}")
        extra = 0
        if (c & 1) and c < NC - 1:
            read_ks(c + 1); extra = 2
        if c == NC - 1:
            read_sz(0); extra = 4 if o.ilv else 2
        issue(u0 + upc - 1 + R)
        if c == o.nat:
            nonce_atomic()
        for m in range(4):
            a(f"s_waitcnt lgkmcnt({3-m+extra})")
            cc = "0" if m == 0 else vr(S + 4*c, 4)
            a(f"v_mfma_f32_16x16x32_bf16 {vr(S+4*c,4)}, {vr(T+4*m,4)}, {vr(Q+4*m,4)}, {cc}")
    a.mute = ()
    if o.mutek:
        a("s_waitcnt lgkmcnt(0)")
    stamp()
    s0 = S + 4*(NC-2)
    a(f"v_max3_f32 {vr(mx0)}, {vr(mx0)}, {vr(s0)}, {vr(s0+1)}")
    a(f"v_max3_f32 {vr(mx1)}, {vr(mx1)}, {vr(s0+2)}, {vr(s0+3)}")
    eLane, eW, eR, eG, eZ, eML, eH, vMx = KF, KF+1, KF+2, KF+3, KF+4, KF+5, KF+6, KF+7
    a(f"v_mbcnt_lo_u32_b32 {vr(eLane)}, -1, 0")
    a(f"v_mbcnt_hi_u32_b32 {vr(eLane)}, -1, {vr(eLane)}")
    a(f"v_and_b32 {vr(eH)}, 7, {vr(eLane)}")
    a(f"v_mul_u32_u24 {vr(eW)}, {HS}, {vr(eH)}")
    a(f"v_bfe_u32 {vr(eR)}, {vr(eLane)}, 3, 1")
    a(f"v_lshl_add_u32 {vr(eW)}, {vr(eR)}, 8, {vr(eW)}")
    a(f"v_lshrrev_b32 {vr(eR)}, 4, {vr(eLane)}")
    a(f"v_lshl_add_u32 {vr(eW)}, {vr(eR)}, 6, {vr(eW)}")
    s0 = S + 4*(NC-1)
    a(f"v_max3_f32 {vr(mx0)}, {vr(mx0)}, {vr(s0)}, {vr(s0+1)}")
    a(f"v_max3_f32 {vr(mx1)}, {vr(mx1)}, {vr(s0+2)}, {vr(s0+3)}")
    def xlane(op, x0, x1):
        a(f"v_mov_b32 {vr(x1)}, {vr(x0)}")
        a("s_nop 1")
        a(f"v_permlane32_swap_b32 {vr(x0)}, {vr(x1)}")
        a("s_nop 1")
        a(f"{op} {vr(x0)}, {vr(x0)}, {vr(x1)}")
        a(f"v_mov_b32 {vr(x1)}, {vr(x0)}")
        a("s_nop 1")
        a(f"v_permlane16_swap_b32 {vr(x0)}, {vr(x1)}")
        a("s_nop 1")
        a(f"{op} {vr(x0)}, {vr(x0)}, {vr(x1)}")
    a(f"v_max_f32 {vr(mx0)}, {vr(mx0)}, {vr(mx1)}")
    xlane("v_max_f32", mx0, mx1)
    a(f"v_mul_f32 {vr(vMx)}, {sr(sC1)}, {vr(mx0)}")

    def make_p(c):
        s0 = S + 4*c
        z = SZ + 4 * (c & 1)
        p = s0 if o.ahead else PP + 2 * (c & 1)
        for r in range(4):
            a(f"v_fma_f32 {vr(s0+r)}, {vr(s0+r)}, {sr(sC1)}, -{vr(vMx)}")
        for r in range(4):
            a(f"v_exp_f32 {vr(s0+r)}, {vr(s0+r)}")
        a("s_waitcnt lgkmcnt(0)")
        a(f"v_lshlrev_b32 {vr(KR)}, 16, {vr(z)}")
        a(f"v_and_b32 {vr(KR+1)}, {sr(sHi)}, {vr(z)}")
        a(f"v_lshlrev_b32 {vr(KR+2)}, 16, {vr(z+1)}")
        a(f"v_and_b32 {vr(KR+3)}, {sr(sHi)}, {vr(z+1)}")
        if c + 1 < NC:
            read_sz(c + 1)
        a(f"v_add_f32 {vr(mx0)}, {vr(s0)}, {vr(s0+1)}")
        a(f"v_add_f32 {vr(mx1)}, {vr(s0+2)}, {vr(s0+3)}")
        for r in range(4):
            a(f"v_mul_f32 {vr(s0+r)}, {vr(s0+r)}, {vr(KR+r)}")
        if c == 0:
            a(f"v_add_f32 {vr(vL)}, {vr(mx0)}, {vr(mx1)}")
        else:
            a(f"v_add_f32 {vr(mx0)}, {vr(mx0)}, {vr(mx1)}")
        for r in range(4):
            a(f"v_and_b32 {vr(KR+r)}, {vr(vM)}, {vr(s0+r)}")
        if c > 0:
            a(f"v_add_f32 {vr(vL)}, {vr(vL)}, {vr(mx0)}")
        for r in range(4):
            a(f"v_sub_f32 {vr(s0+r)}, {vr(s0+r)}, {vr(KR+r)}")
        a(f"v_perm_b32 {vr(p)}, {vr(s0+1)}, {vr(s0)}, {sr(sPerm)}")
        a(f"v_perm_b32 {vr(p+1)}, {vr(s0+3)}, {vr(s0+2)}, {sr(sPerm)}")
        a("s_nop 1")
        cc = "0" if c == 0 else vr(CZ, 4)
        a(f"v_mfma_f32_16x16x16_bf16 {vr(CZ,4)}, {vr(z+2,2)}, {vr(p,2)}, {cc}")
    make_p(0)
    stamp()

    def late_setup():
        a.comment("late setup")
        a(f"s_mul_i32 {sr(sT1)}, s3, {WREG}")
        a(f"v_add_u32 {vr(eW)}, {sr(sT1)}, {vr(eW)}")
        a(f"v_lshrrev_b32 {vr(T)}, 5, {vr(eLane)}")
        a(f"s_lshl_b32 {sr(sT1)}, s3, 1")
        a(f"v_add_u32 {vr(T)}, {sr(sT1)}, {vr(T)}")
        a(f"v_mul_u32_u24 {vr(eR)}, {HS}, {vr(T)}")
        a(f"v_add_u32 {vr(eR)}, {vr(vS8)}, {vr(eR)}")
        a(f"v_lshlrev_b32 {vr(eML)}, 4, {vr(T)}")
        a(f"v_lshlrev_b32 {vr(eG)}, 10, {vr(T)}")
        a(f"v_lshl_add_u32 {vr(eG)}, {vr(vS8)}, 1, {vr(eG)}")
        a(f"s_lshl_b32 s22, s2, 13")
        a("s_cmp_lg_u32 s3, 3")
        a("s_cbranch_scc1 L_no_nonce2")
        a(f"v_readfirstlane_b32 {sr(sT1)}, {vr(NV)}")
        a("s_nop 3")
        a(f"s_cmp_eq_u32 {sr(sT1)}, 0")
        a(f"s_cselect_b32 {sr(sT1)}, {sr(sNon)}, {sr(sT1)}")
        a(f"v_mov_b32 {vr(NV)}, {sr(sT1)}")
        a(f"v_mov_b32 {vr(NV+1)}, 0")
        a(f"ds_write_b32 {vr(NV+1)}, {vr(NV)} offset:{LDS_N}")
        a.label("L_no_nonce2")
        a(f"v_lshrrev_b32 {vr(NV+2)}, 3, {vr(eLane)}")
        a(f"v_lshlrev_b32 {vr(NV+2)}, 13, {vr(NV+2)}")
        a(f"v_lshl_add_u32 {vr(NV+2)}, {vr(eH)}, 4, {vr(NV+2)}")
        a(f"v_lshlrev_b32 {vr(NV+3)}, 2, {vr(eH)}")
        a(f"v_mov_b32 {vr(NV+1)}, 0")
        a(f"v_lshlrev_b32 {vr(NV+4)}, 4, {vr(eH)}")
        a(f"s_lshl_b32 {sr(sT1)}, s3, 2")
        a(f"v_add_u32 {vr(NV+4)}, {sr(sT1)}, {vr(NV+4)}")
        a(f"ds_write_b32 {vr(NV+4)}, {vr(vMx)} offset:{LDS_M}")
        if o.evenfin:
            a(f"s_and_b32 {sr(sT1)}, {sr(sWgp)}, 1")
            if o.evenfin == 2:
                a(f"s_xor_b32 {sr(sT1)}, {sr(sT1)}, 1")
            a(f"s_lshl_b32 {sr(sT1)}, {sr(sT1)}, 4")
            a(f"s_lshr_b32 {sr(sWgp)}, {sr(sWgp)}, 1")
            a(f"s_or_b32 {sr(sWgp)}, {sr(sWgp)}, {sr(sT1)}")
        a(f"s_lshl_b32 s16, {sr(sPair)}, 18")
        a(f"s_lshl_b32 s17, {sr(sWgp)}, 9")
        a("s_add_u32 s16, s16, s17")
        a("s_lshl_b32 s17, s3, 7")
        a("s_add_u32 s16, s16, s17")
        a("s_add_u32 s17, s16, 0x10000")
        a("s_add_u32 s18, s16, 0x20000")
        a("s_add_u32 s19, s16, 0x30000")
        a(f"s_lshl_b32 s20, {sr(sPair)}, 11")
        a(f"s_lshl_b32 s21, {sr(sWgp)}, 7")
        a("s_add_u32 s20, s20, s21")
        a("s_lshl_b32 s21, s3, 5")
        a("s_add_u32 s20, s20, s21")
        a(f"s_mov_b32 s21, 0x{0x40000 if o.stamp else 0x1000000:x}")
        if o.own:
            a(f"s_and_b32 {sr(sT1)}, {sr(sWgp)}, 7")
            a(f"s_lshl_b32 {sr(sT1)}, {sr(sT1)}, 3")
            a(f"s_mov_b64 s[28:29], 0xff")
            a(f"s_lshl_b64 s[28:29], s[28:29], {sr(sT1)}")
            a(f"s_cmp_lt_u32 {sr(sWgp)}, 8")
            a("s_cselect_b64 s[24:25], s[28:29], 0")
            a("s_cselect_b64 s[26:27], 0, s[28:29]")
            a(f"s_lshl_b32 {sr(sT1)}, {sr(sWgp)}, 9")
            a(f"s_lshl_b32 {sr(sT2)}, s3, 7")
            a(f"s_add_u32 {sr(sT1)}, {sr(sT1)}, {sr(sT2)}")
            a(f"s_and_b32 {sr(sT1)}, {sr(sT1)}, 0x1fff")
            a(f"v_lshlrev_b32 {vr(NV+5)}, 4, {vr(eH)}")
            a(f"v_add_u32 {vr(NV+5)}, {sr(sT1)}, {vr(NV+5)}")

    vu0 = NC * upc
    for c in range(NC):
        u0 = vu0 + c * upc
        p = S + 4*c if o.ahead else PP + 2 * (c & 1)
        a.mute = MK[o.mutev]
        if o.ahead:
            todo = {0: [1], 1: [2]}.get(c, [2*c - 1, 2*c])
            for cc_ in todo:
                if cc_ < NC:
                    make_p(cc_)
        elif c + 1 < NC:
            make_p(c + 1)
        if c == 1:
            a.mute = ()
            late_setup()
            a.mute = MK[o.mutev]
        if c == o.warm:
            a("s_mov_b64 exec, 1")
            a.vmem(f"buffer_load_dword {vr(NV+6)}, {vr(NV+1)}, {sr(sWS,4)}, s22 offen {o.ldf}", "warm")
            a.vmem(f"buffer_load_dword {vr(NV+7)}, {vr(NV+1)}, {sr(sOUT,4)}, 0 offen {o.ldf}", "warm")
            a("s_mov_b64 exec, -1")
        last = c == NC - 1
        E = S
        if (c == 10 if o.ahead else last):
            a(f"v_mov_b32 {vr(mx0)}, {vr(vL)}")
            xlane("v_add_f32", mx0, mx1)
            a(f"ds_write_b32 {vr(NV+4)}, {vr(mx0)} offset:{LDS_L}")
            for x in range(32):
                a(f"v_sub_f32 {vr(O+x)}, {vr(O+x)}, {vr(CZ)}")
        for half in range(2):
            nn = half * 4 + 3
            rr = [reg(u0, half * 4 + e) for e in range(4)]
            if last:
                for e in range(4):
                    n2 = half * 4 + e
                    a.wait_vm({(u0 + n2 // U, n2 % U)})
                    for k in range(4):
                        a(f"v_cvt_f32_i32 {vr(rr[e]+k)}, {vr(rr[e]+k)}")
                    if e & 1:
                        for cc in range(4):
                            t = T + 8*half + 2*cc + (e >> 1)
                            a(f"v_cvt_pk_bf16_f32 {vr(t)}, {vr(rr[e-1]+cc)}, {vr(rr[e]+cc)}")
                    if half == 1 and e == 1:
                        for cc in range(4):
                            for r in range(4):
                                a0 = O + 4*cc + r
                                a(f"v_add_f32_dpp {vr(E+4*r+cc)}, {vr(a0)}, {vr(a0)} row_ror:8 row_mask:0xf bank_mask:0x3")
            else:
                a.wait_vm({(u0 + nn // U, nn % U)})
                for e in range(4):
                    for k in range(4):
                        a(f"v_cvt_f32_i32 {vr(rr[e]+k)}, {vr(rr[e]+k)}")
                for cc in range(4):
                    t = T + 8*half + 2*cc
                    a(f"v_cvt_pk_bf16_f32 {vr(t)}, {vr(rr[0]+cc)}, {vr(rr[1]+cc)}")
                    a(f"v_cvt_pk_bf16_f32 {vr(t+1)}, {vr(rr[2]+cc)}, {vr(rr[3]+cc)}")
            if U == 4 or half == 1:
                issue(u0 + nn // U + R)
            for cc in range(4):
                t = T + 8*half + 2*cc
                acc = O + 16*half + 4*cc
                cin = "0" if c == 0 else vr(acc, 4)
                a(f"v_mfma_f32_16x16x16_bf16 {vr(acc,4)}, {vr(t,2)}, {vr(p,2)}, {cin}")
    a.mute = ()
    stamp()

    a("s_nop 4")
    for cc in range(4):
        for r in range(4):
            a1 = O + 16 + 4*cc + r
            a(f"v_add_f32_dpp {vr(E+4*r+cc)}, {vr(a1)}, {vr(a1)} row_ror:8 row_mask:0xf bank_mask:0xc")
            if cc == 3:
                a(f"ds_write_b128 {vr(eW)}, {vr(E+4*r,4)} offset:{16*r}")
    a("s_waitcnt lgkmcnt(0)")
    a("s_barrier")
    F = 0
    Mr, Lr = F + 16, F + 20
    P = 48
    def poll_issue():
        for n in range(4):
            if o.own and n < 2:
                a(f"s_not_b64 exec, s[{24+2*n}:{25+2*n}]")
            if o.own and n == 2:
                a("s_mov_b64 exec, -1")
            a(f"buffer_load_dwordx4 {vr(P+4*n,4)}, {vr(NV+2)}, {sr(sWS,4)}, s{16+n} offen {o.ldf}")
    a(f"ds_read_b128 {vr(Mr,4)}, {vr(eML)} offset:{LDS_M}")
    a(f"ds_read_b128 {vr(Lr,4)}, {vr(eML)} offset:{LDS_L}")
    for w in range(4):
        a(f"ds_read_b64 {vr(F+4*w,2)}, {vr(eR)} offset:{w*WREG}")
        a(f"ds_read_b64 {vr(F+4*w+2,2)}, {vr(eR)} offset:{w*WREG+256}")
    a(f"ds_read_b32 {vr(NV)}, {vr(NV+1)} offset:{LDS_N}")
    if o.own == 1:
        a(f"s_cmp_lt_u32 {sr(sWgp)}, 16")
        a("s_cbranch_scc0 L_no_prepoll")
        poll_issue()
        a.label("L_no_prepoll")
    a("s_waitcnt lgkmcnt(10)")
    G = F + 24
    a(f"v_max3_f32 {vr(G)}, {vr(Mr)}, {vr(Mr+1)}, {vr(Mr+2)}")
    a(f"v_max_f32 {vr(G)}, {vr(G)}, {vr(Mr+3)}")
    for w in range(4):
        a(f"v_sub_f32 {vr(Mr+w)}, {vr(Mr+w)}, {vr(G)}")
    for w in range(4):
        a(f"v_exp_f32 {vr(Mr+w)}, {vr(Mr+w)}")
    a("s_waitcnt lgkmcnt(9)")
    a(f"v_mul_f32 {vr(G+1)}, {vr(Mr)}, {vr(Lr)}")
    for w in range(1, 4):
        a(f"v_fmac_f32 {vr(G+1)}, {vr(Mr+w)}, {vr(Lr+w)}")
    a(f"v_rcp_f32 {vr(G+2)}, {vr(G+1)}")
    a(f"v_log_f32 {vr(G+3)}, {vr(G+1)}")
    a("s_nop 0")
    for w in range(4):
        a(f"v_mul_f32 {vr(Mr+w)}, {vr(Mr+w)}, {vr(G+2)}")
    O1, O2 = 32, 36
    a(f"v_add_f32 {vr(O1+2)}, {vr(G)}, {vr(G+3)}")
    a(f"v_add_f32 {vr(O2+2)}, {vr(G)}, {vr(G+3)}")
    a("s_waitcnt lgkmcnt(0)")
    dst = [O1, O1+1, O2, O2+1]
    for k in range(4):
        a(f"v_mul_f32 {vr(dst[k])}, {vr(Mr)}, {vr(F+k)}")
    for w in range(1, 4):
        for k in range(4):
            a(f"v_fmac_f32 {vr(dst[k])}, {vr(Mr+w)}, {vr(F+4*w+k)}")
    a(f"v_mov_b32 {vr(O1+3)}, {vr(NV)}")
    a(f"v_mov_b32 {vr(O2+3)}, {vr(NV)}")
    a(f"s_cmp_lt_u32 {sr(sWgp)}, {0 if o.nopoll else 16}")
    if o.nopoll == 2:
        a.mute = ("buffer_store",)
    a(f"buffer_store_dwordx4 {vr(O1,4)}, {vr(eG)}, {sr(sWS,4)}, s22 offen {o.stf}")
    a(f"buffer_store_dwordx4 {vr(O2,4)}, {vr(eG)}, {sr(sWS,4)}, s22 offen offset:512 {o.stf}")
    a.mute = ()
    if o.stamp == 2:
        a("s_memrealtime s[82:83]")
        a("s_memrealtime s[80:81]")
    a("s_cbranch_scc0 L_fin_done")
    if o.own:
        if o.own == 2:
            poll_issue()
        a(f"ds_write_b128 {vr(eG)}, {vr(O1,4)} offset:{LDS_S}")
        a(f"ds_write_b128 {vr(eG)}, {vr(O2,4)} offset:{LDS_S+512}")
        a("s_waitcnt lgkmcnt(0)")
        a("s_barrier")
        a("s_mov_b64 exec, s[24:25]")
        a(f"ds_read_b128 {vr(P,4)}, {vr(NV+5)} offset:{LDS_S}")
        a("s_mov_b64 exec, s[26:27]")
        a(f"ds_read_b128 {vr(P+4,4)}, {vr(NV+5)} offset:{LDS_S}")
        a("s_mov_b64 exec, -1")
        a(f"s_waitcnt vmcnt({2 if o.own == 1 else 0}) lgkmcnt(0)")
        a("s_branch L_check")
    if o.sel:
        for n in range(4):
            a(f"s_mov_b64 s[{24+2*n}:{25+2*n}], -1")
        a.label("L_poll")
        for n in range(4):
            a(f"s_mov_b64 exec, s[{24+2*n}:{25+2*n}]")
            a(f"s_cbranch_execz L_skip{n}")
            a(f"buffer_load_dwordx4 {vr(P+4*n,4)}, {vr(NV+2)}, {sr(sWS,4)}, s{16+n} offen {o.ldf}")
            a.label(f"L_skip{n}")
        a("s_mov_b64 exec, -1")
        a("s_sub_u32 s21, s21, 1")
        a("s_cbranch_scc1 L_fin_done")
        a("s_waitcnt vmcnt(0)")
        for n in range(4):
            a(f"v_xor_b32 {vr(P+16+n)}, {vr(P+4*n+3)}, {vr(NV)}")
            a(f"v_xor_b32_dpp {vr(P+20+n)}, {vr(P+4*n+2)}, {vr(P+4*n+2)} quad_perm:[1,0,3,2] {DPP}")
        for n in range(4):
            a(f"v_or_b32 {vr(P+16+n)}, {vr(P+16+n)}, {vr(P+20+n)}")
        for n in range(4):
            a(f"v_cmp_ne_u32 s[{24+2*n}:{25+2*n}], 0, {vr(P+16+n)}")
        a(f"v_max3_f32 {vr(P+24)}, {vr(P+2)}, {vr(P+6)}, {vr(P+10)}")
        a(f"v_max_f32 {vr(P+24)}, {vr(P+24)}, {vr(P+14)}")
        a("s_or_b64 s[32:33], s[24:25], s[26:27]")
        a("s_or_b64 s[34:35], s[28:29], s[30:31]")
        a("s_or_b64 s[32:33], s[32:33], s[34:35]")
        a("s_cbranch_scc1 L_poll")
    else:
        a.label("L_poll")
        poll_issue()
        a("s_sub_u32 s21, s21, 1")
        a("s_cbranch_scc1 L_fin_done")
        if o.own:
            a("s_waitcnt vmcnt(0)")
            a.label("L_check")
        for n in range(4):
            if not o.own:
                a(f"s_waitcnt vmcnt({3-n})")
            a(f"v_xor_b32 {vr(P+16+n)}, {vr(P+4*n+3)}, {vr(NV)}")
            a(f"v_xor_b32_dpp {vr(P+20+n)}, {vr(P+4*n+2)}, {vr(P+4*n+2)} quad_perm:[1,0,3,2] {DPP}")
        a(f"v_or3_b32 {vr(P+16)}, {vr(P+16)}, {vr(P+17)}, {vr(P+18)}")
        a(f"v_or3_b32 {vr(P+20)}, {vr(P+20)}, {vr(P+21)}, {vr(P+22)}")
        a(f"v_or3_b32 {vr(P+16)}, {vr(P+16)}, {vr(P+19)}, {vr(P+23)}")
        a(f"v_or_b32 {vr(P+16)}, {vr(P+16)}, {vr(P+20)}")
        a(f"v_cmp_ne_u32 vcc, 0, {vr(P+16)}")
        a(f"v_max3_f32 {vr(P+24)}, {vr(P+2)}, {vr(P+6)}, {vr(P+10)}")
        a(f"v_max_f32 {vr(P+24)}, {vr(P+24)}, {vr(P+14)}")
        if o.sleep:
            a("s_cbranch_vccz L_poll_ok")
            a(f"s_sleep {o.sleep}")
            a("s_branch L_poll")
            a.label("L_poll_ok")
        else:
            a("s_cbranch_vccnz L_poll")
    if o.stamp == 2:
        a("s_memrealtime s[80:81]")
    def xl3(op, xs, ts):
        a("s_nop 1")
        for x in xs:
            a(f"{op}_dpp {vr(x)}, {vr(x)}, {vr(x)} row_ror:8 {DPP}")
        for sw in ("v_permlane16_swap_b32", "v_permlane32_swap_b32"):
            for x, t in zip(xs, ts):
                a(f"v_mov_b32 {vr(t)}, {vr(x)}")
            a("s_nop 1")
            for x, t in zip(xs, ts):
                a(f"{sw} {vr(x)}, {vr(t)}")
            a("s_nop 1")
            for x, t in zip(xs, ts):
                a(f"{op} {vr(x)}, {vr(x)}, {vr(t)}")
    xl3("v_max_f32", [P+24], [P+25])
    for n in range(4):
        a(f"v_sub_f32 {vr(P+4*n+2)}, {vr(P+4*n+2)}, {vr(P+24)}")
    for n in range(4):
        a(f"v_exp_f32 {vr(P+4*n+2)}, {vr(P+4*n+2)}")
    W, A0, A1 = P+26, P+27, P+28
    a(f"v_add_f32 {vr(W)}, {vr(P+2)}, {vr(P+6)}")
    a(f"v_mul_f32 {vr(A0)}, {vr(P+2)}, {vr(P)}")
    a(f"v_mul_f32 {vr(A1)}, {vr(P+2)}, {vr(P+1)}")
    a(f"v_add_f32 {vr(W)}, {vr(W)}, {vr(P+10)}")
    for n in range(1, 4):
        a(f"v_fmac_f32 {vr(A0)}, {vr(P+4*n+2)}, {vr(P+4*n)}")
        a(f"v_fmac_f32 {vr(A1)}, {vr(P+4*n+2)}, {vr(P+4*n+1)}")
    a(f"v_add_f32 {vr(W)}, {vr(W)}, {vr(P+14)}")
    xl3("v_add_f32", [W, A0, A1], [P+29, P+30, P+31])
    a(f"v_rcp_f32 {vr(W)}, {vr(W)}")
    a("s_mov_b64 exec, 0xff")
    a(f"v_mul_f32 {vr(A0)}, {vr(A0)}, {vr(W)}")
    a(f"v_mul_f32 {vr(A1)}, {vr(A1)}, {vr(W)}")
    a(f"v_cvt_pk_bf16_f32 {vr(A0)}, {vr(A0)}, {vr(A1)}")
    a(f"buffer_store_dword {vr(A0)}, {vr(NV+3)}, {sr(sOUT,4)}, s20 offen")
    a("s_mov_b64 exec, -1")
    a.label("L_fin_done")
    if o.stamp:
        stamp()
        a("s_waitcnt lgkmcnt(0)")
        a("s_getreg_b32 s5, hwreg(HW_REG_XCC_ID)")
        a("s_lshl_b32 s4, s2, 2")
        a("s_add_u32 s4, s4, s3")
        a("s_lshl_b32 s4, s4, 6")
        a("s_add_u32 s4, s4, 0x4000000")
        a("s_nop 1")
        for i in range(8):
            a(f"v_mov_b32 v{i}, s{72+2*i}")
        a("v_mov_b32 v8, s5")
        a("v_mov_b32 v9, s21")
        a("v_mov_b32 v12, 0")
        a("s_mov_b64 exec, 1")
        a(f"buffer_store_dwordx4 v[0:3], v12, {sr(sWS,4)}, s4 offen")
        a(f"buffer_store_dwordx4 v[4:7], v12, {sr(sWS,4)}, s4 offen offset:16")
        a(f"buffer_store_dwordx2 v[8:9], v12, {sr(sWS,4)}, s4 offen offset:32")
    a.label("L_main_end")
    a("s_endpgm")
    lds = LDS_N + 16
    return a.text(), nvgpr, lds

def main():
    ap = argparse.ArgumentParser()
    ap.add_argument("-o", default="/dev/stdout")
    ap.add_argument("--ring", type=int, default=3)
    ap.add_argument("--unit", type=int, default=8)
    ap.add_argument("--stamp", type=int, default=0)
    ap.add_argument("--ksub", type=int, default=4)
    ap.add_argument("--kfirst", type=int, default=1)
    ap.add_argument("--nat", type=int, default=-1)
    ap.add_argument("--pre", type=int, default=2)
    ap.add_argument("--thr", type=int, default=1)
    ap.add_argument("--own", type=int, default=0)
    ap.add_argument("--evenfin", type=int, default=1)
    ap.add_argument("--par", type=int, default=0)
    ap.add_argument("--par1", type=int, default=99)
    ap.add_argument("--parw", type=int, default=2)
    ap.add_argument("--mid", type=int, default=-1)
    ap.add_argument("--midn", type=int, default=4)
    ap.add_argument("--ahead", type=int, default=0)
    ap.add_argument("--tlb", type=int, default=0)
    ap.add_argument("--bar", type=int, default=0)
    ap.add_argument("--bar1", type=int, default=99)
    ap.add_argument("--smnt", type=int, default=0)
    ap.add_argument("--nopoll", type=int, default=0)
    ap.add_argument("--nodma", type=int, default=0)
    ap.add_argument("--mutek", type=int, default=0)
    ap.add_argument("--mutev", type=int, default=0)
    ap.add_argument("--vco", type=int, default=0)
    ap.add_argument("--cpf", type=int, default=0)
    ap.add_argument("--cpm", type=int, default=32)
    ap.add_argument("--start", type=int, default=0)
    ap.add_argument("--ilv", type=int, default=0)
    ap.add_argument("--sel", type=int, default=0)
    ap.add_argument("--warm", type=int, default=-1)
    ap.add_argument("--stf", default="sc1")
    ap.add_argument("--ldf", default="sc1")
    ap.add_argument("--sleep", type=int, default=0)
    ap.add_argument("--thr0", type=int, default=2)
    ap.add_argument("--thr1", type=int, default=99)
    ap.add_argument("--thrall", type=int, default=1)
    ap.add_argument("--thro", type=int, default=-1)
    ap.add_argument("--thrm", type=int, default=1)
    ap.add_argument("--ldspad", type=int, default=81920)
    o = ap.parse_args()
    k1 = NAME + "_kernel"
    body1, nv1, lds1 = gen_main(o, k1)
    s = HEADER
    s += f"; @launch grid=(256,1,1) block=(256,1,1) lds={lds1}\n"
    s += DOC
    s += '.amdgcn_target "amdgcn-amd-amdhsa--gfx950"\n.text\n'
    s += f".globl {k1}\n.p2align 8\n.type {k1},@function\n{body1}"
    s += '.section .rodata,"a"\n.p2align 6\n'
    s += kd(k1, 264, 96)
    open(o.o, "w").write(s)

if __name__ == "__main__":
    main()
```

```python
import argparse
from gen import HEADER, NAME, kd, Asm, vr, sr
ap = argparse.ArgumentParser()
ap.add_argument("-o")
ap.add_argument("--bits", default="n0,n1,n2,w0,w1,c0,c1,g0,g1,g2,g3,g4,c2,c3")
ap.add_argument("--thr", type=int, default=1)
ap.add_argument("--rot", type=int, default=0)
ap.add_argument("--lane", default="")
o = ap.parse_args()
bits = o.bits.split(",")
B0 = 24 - len(bits)
pos = {b: B0 + i for i, b in enumerate(bits)}
if B0 == 10:
    pos["l4"], pos["l5"] = 8, 9
a = Asm(); k = NAME + "_kernel"
def val(prefix, x, n): return sum(((x >> i) & 1) << pos[f"{prefix}{i}"] for i in range(n))
a.label(k)
a("s_cmp_ge_u32 s2, 256"); a("s_cbranch_scc1 L_end")
a("s_memrealtime s[72:73]")
a("s_load_dwordx2 s[36:37], s[0:1], 8")
a("s_load_dwordx2 s[40:41], s[0:1], 16")
a("s_load_dwordx2 s[64:65], s[0:1], 72")
a("v_lshrrev_b32 v1, 6, v0"); a("v_and_b32 v2, 63, v0"); a("v_readfirstlane_b32 s3, v1")
for b, sz in ((36, 0x8000000), (40, 0x8000000), (64, 0x20000000)):
    a(f"s_mov_b32 s{b+2}, 0x{sz:x}"); a(f"s_mov_b32 s{b+3}, 0x20000")
a("v_and_b32 v3, 15, v2"); a("v_lshlrev_b32 v3, 4, v3")
a("v_bfe_u32 v4, v2, 4, 1"); a(f"v_lshl_add_u32 v3, v4, {pos['l4']}, v3")
a("v_bfe_u32 v4, v2, 5, 1"); a(f"v_lshl_add_u32 v4, v4, {pos['l5']}, v3")
for n in range(1, 8):
    a(f"v_add_u32 v{4+n}, 0x{val('n', n, 3):x}, v4")
a("s_lshr_b32 s15, s2, 5"); a("s_and_b32 s14, s2, 31")
a("s_lshl_b32 s4, s15, 24")
for pre, src, n in (("w", "s3", 2), ("g", "s14", 5)):
    for i in range(n):
        a(f"s_bfe_u32 s9, {src}, 0x{(1<<16)|i:x}"); a(f"s_lshl_b32 s9, s9, {pos[f'{pre}{i}']}"); a("s_or_b32 s4, s4, s9")
if o.rot:
    a("s_mul_i32 s16, s2, 0x9e3779b1"); a("s_lshr_b32 s16, s16, 28"); a(f"s_and_b32 s16, s16, {o.rot}")
    for i in range(4):
        a(f"s_bfe_u32 s9, s16, 0x{(1<<16)|i:x}"); a(f"s_lshl_b32 s9, s9, {pos[f'c{i}']}"); a("s_or_b32 s4, s4, s9")
a("s_waitcnt lgkmcnt(0)")
seq = [(36, c) for c in range(16)] + [(40, c) for c in range(16)]
for i, (srd, c) in enumerate(seq):
    a(f"s_xor_b32 s5, s4, 0x{val('c', c, 4):x}")
    if i >= 2:
        a(f"s_waitcnt vmcnt({o.thr})")
    for n in range(8):
        a(f"buffer_load_dwordx4 {vr(16+(i%3)*32+4*n,4)}, v{4+n}, s[{srd}:{srd+3}], s5 offen nt")
    if i == 15:
        a("s_memrealtime s[78:79]")
a("s_waitcnt vmcnt(0)")
a("s_memrealtime s[80:81]")
a("s_waitcnt lgkmcnt(0)")
a("s_getreg_b32 s5, hwreg(HW_REG_XCC_ID)")
a("s_lshl_b32 s4, s2, 2"); a("s_add_u32 s4, s4, s3")
a("s_lshl_b32 s4, s4, 6"); a("s_add_u32 s4, s4, 0x4000000")
for i, s in enumerate((72, 72, 72, 72, 78, 78, 80, 80)):
    a(f"v_mov_b32 v{i}, s{s}")
a("v_mov_b32 v8, s5"); a("v_mov_b32 v12, 0"); a("s_mov_b64 exec, 1")
a("buffer_store_dwordx4 v[0:3], v12, s[64:67], s4 offen")
a("buffer_store_dwordx4 v[4:7], v12, s[64:67], s4 offen offset:16")
a("buffer_store_dword v8, v12, s[64:67], s4 offen offset:32")
a.label("L_end"); a("s_endpgm")
s = HEADER + "; @launch grid=(256,1,1) block=(256,1,1) lds=0\n"
s += '.amdgcn_target "amdgcn-amd-amdhsa--gfx950"\n.text\n'
s += f".globl {k}\n.p2align 8\n.type {k},@function\n{a.text()}"
s += '.section .rodata,"a"\n.p2align 6\n' + kd(k, 512, 96)
open(o.o, "w").write(s)
```
